```python
import torch

def _softmax(x, axis=-1):
    return torch.softmax(x, dim=axis)

def _gelu(x):
    return torch.nn.functional.gelu(x, approximate='tanh')

def _silu(x):
    return torch.nn.functional.silu(x)

def _sigmoid(x):
    return torch.sigmoid(x)

def _layernorm(x, axis=-1, eps=1e-05):
    m = x.mean(dim=axis, keepdim=True)
    v = x.var(dim=axis, keepdim=True, unbiased=False)
    return (x - m) / torch.sqrt(v + eps)

def _scatter_add(tgt, idx, src, axis=0):
    return tgt.clone().index_add_(axis, idx, src)

def _segment_sum(src, seg, n):
    out = torch.zeros((n,) + src.shape[1:], dtype=src.dtype)
    return out.index_add_(0, seg, src)

def _pad(x, pw):
    flat = tuple((v for pair in reversed(pw) for v in pair))
    return torch.nn.functional.pad(x, flat)
kernel_name = 'adaLN_cond__compressed_kv_cla__dense_activation_relu__decode'

def setup_inputs():

    _w = lambda a: (lambda t: t.to(torch.bfloat16) if t.is_floating_point() else t)(torch.as_tensor(a))

    def _A_setup():
        B, H, Sq, Sk, D, M = (8, 32, 1, 4096, 128, 512)
        Dc = 4 * D
        return {'x': _w((lambda *s: torch.randn(*s, dtype=torch.bfloat16) * 0.05)(B, Sq, M)), 'c_kv': _w((lambda *s: torch.randn(*s, dtype=torch.bfloat16) * 1.6)(B, Sk, Dc)), 'w_q': _w((lambda *s: torch.randn(*s, dtype=torch.bfloat16) * 1.6)(M, H, D) * M ** (-0.5)), 'w_uk': _w((lambda *s: torch.randn(*s, dtype=torch.bfloat16) * 1.6)(Dc, H, D) * Dc ** (-0.5)), 'w_uv': _w((lambda *s: torch.randn(*s, dtype=torch.bfloat16) * 1.6)(Dc, H, D) * Dc ** (-0.5)), 'w_o': _w((lambda *s: torch.randn(*s, dtype=torch.bfloat16) * 1.6)(H, D, M) * (H * D) ** (-0.5))}
    _A_in = _A_setup()

    def _B_setup():
        B, S, D, Dff = (8, 1, 512, 1792)
        return {'x': _w((lambda *s: torch.randn(*s, dtype=torch.bfloat16) * 0.05)(B, S, D)), 'w1': _w((lambda *s: torch.randn(*s, dtype=torch.bfloat16) * 0.05)(D, Dff)), 'w2': _w((lambda *s: torch.randn(*s, dtype=torch.bfloat16) * 0.05)(Dff, D))}
    _B_in = _B_setup()
    return {'A_x': _A_in['x'], 'A_c_kv': _A_in['c_kv'], 'A_w_q': _A_in['w_q'], 'A_w_uk': _A_in['w_uk'], 'A_w_uv': _A_in['w_uv'], 'A_w_o': _A_in['w_o'], 'B_x': _B_in['x'], 'B_w1': _B_in['w1'], 'B_w2': _B_in['w2'], 'c': _w((lambda *s: torch.randn(*s, dtype=torch.bfloat16) * 0.2)(8, 512) * 8.0), 'w_mod': _w((lambda *s: torch.randn(*s, dtype=torch.bfloat16) * 0.2)(512, 6 * 512) * 512 ** (-0.5) * 8.0)}

def reference(A_x, A_c_kv, A_w_q, A_w_uk, A_w_uv, A_w_o, B_x, B_w1, B_w2, c, w_mod):

    def _A_ref(x, c_kv, w_q, w_uk, w_uv, w_o):
        B, Sq, M = (x.shape[0], x.shape[1], x.shape[2])
        Sk = c_kv.shape[1]
        H, D = (w_q.shape[1], w_q.shape[2])
        q = torch.einsum('bqm,mhd->bhqd', x, w_q)
        k = torch.einsum('bkc,chd->bhkd', c_kv, w_uk)
        v = torch.einsum('bkc,chd->bhkd', c_kv, w_uv)
        scores = torch.einsum('bhqd,bhkd->bhqk', q, k) * D ** (-0.5)
        off = Sk - Sq
        qi = torch.arange(Sq)[:, None]
        kj = torch.arange(Sk)[None, :]
        cmask = kj <= qi + off
        scores = torch.where(cmask[None, None], scores, -1000000000.0)
        p = _softmax(scores, axis=-1)
        ctx = torch.einsum('bhqk,bhkd->bhqd', p, v)
        return torch.einsum('bhqd,hdm->bqm', ctx, w_o)

    def _B_ref(x, w1, w2):
        h = torch.einsum('bsd,df->bsf', x, w1)
        zero = torch.zeros_like(h)
        h = torch.maximum(h, zero)
        return torch.einsum('bsf,fd->bsd', h, w2)
    x = A_x
    mod = (_silu(c) @ w_mod).reshape(c.shape[0], 6, 1, -1)
    sa, ca, ga, sb, cb, gb = (mod[:, 0].clone(), mod[:, 1].clone(), mod[:, 2].clone(), mod[:, 3].clone(), mod[:, 4].clone(), mod[:, 5].clone())
    h = _layernorm(x, axis=-1) * (1 + ca) + sa
    x = x + ga * _A_ref(h, A_c_kv, A_w_q, A_w_uk, A_w_uv, A_w_o)
    h = _layernorm(x, axis=-1) * (1 + cb) + sb
    x = x + gb * _B_ref(h, B_w1, B_w2)
    return x
```

```python
NAME = 'adaLN_cond__compressed_kv_cla__dense_activation_relu__decode'
class Asm:
    def __init__(self):
        self.L = []
    def __call__(self, s=''):
        for line in s.split('\n'):
            self.L.append(line.strip())
    def text(self):
        out = []
        for l in self.L:
            if l.endswith(':') or l.startswith('.') or l.startswith(';') or l == '':
                out.append(l)
            else:
                out.append('    ' + l)
        return '\n'.join(out) + '\n'
def header(a, launches):
    for (k, g, b, lds) in launches:
        if k is None:
            a(f'; @launch grid=({g},1,1) block=({b},1,1) lds={lds}')
        else:
            a(f'; @launch kernel={k} grid=({g},1,1) block=({b},1,1) lds={lds}')
    a('.amdgcn_target "amdgcn-amd-amdhsa--gfx950"')
    a('.text')
def kstart(a, k):
    a(f'.globl {k}')
    a('.p2align 8')
    a(f'.type {k},@function')
    a(f'{k}:')
def kdesc(a, k, vgpr, accum, sgpr=102):
    a('.section .rodata,"a"')
    a('.p2align 6')
    a(f'.amdhsa_kernel {k}')
    a(f'.amdhsa_next_free_vgpr {vgpr}')
    a(f'.amdhsa_next_free_sgpr {sgpr}')
    a(f'.amdhsa_accum_offset {accum}')
    a('.amdhsa_group_segment_fixed_size 0')
    a('.amdhsa_kernarg_size 112')
    a('.amdhsa_user_sgpr_count 2')
    a('.amdhsa_user_sgpr_kernarg_segment_ptr 1')
    a('.amdhsa_system_sgpr_workgroup_id_x 1')
    a('.amdhsa_float_denorm_mode_32 3')
    a('.end_amdhsa_kernel')
    a('.text')
```

```python
import re
TRANS = ('v_exp_f32','v_log_f32','v_rcp_f32','v_rsq_f32','v_sqrt_f32','v_sin_f32','v_cos_f32')
def regs(tok):
    tok = tok.strip()
    tok = tok.lstrip('-')
    if tok.startswith('abs(') or tok.startswith('|'): tok = tok.replace('abs(','').replace(')','').replace('|','')
    m = re.fullmatch(r'([vsa])(\d+)', tok)
    if m: return {(m.group(1), int(m.group(2)))}
    m = re.fullmatch(r'([vsa])\[(\d+):(\d+)\]', tok)
    if m: return {(m.group(1), i) for i in range(int(m.group(2)), int(m.group(3))+1)}
    if tok == 'vcc': return {('s','vcc')}
    if tok == 'm0': return {('s','m0')}
    if tok == 'exec': return {('s','exec')}
    return set()
class I:
    def __init__(self, text):
        self.text = text
        t = text.split(';')[0].strip()
        self.label = t[:-1] if t.endswith(':') else None
        self.isinst = bool(t) and not self.label and not t.startswith(('.', '@'))
        self.op = ''; self.R = set(); self.W = set(); self.kind = None; self.C = set(); self.AB = set(); self.data = set()
        self.passes = 0; self.dpp = False; self.target = None
        if not self.isinst: return
        parts = t.split(None, 1)
        op = self.op = parts[0]
        rest = parts[1] if len(parts) > 1 else ''
        ops = [o.strip() for o in re.split(r',(?![^\[]*\])', rest)] if rest else []
        if ops:
            last = ops[-1].split()
            mods = last[1:]; ops[-1] = last[0] if last else ''
        else: mods = []
        rs = [regs(o) for o in ops]
        U = lambda l: set().union(*l) if l else set()
        if op.startswith('v_mfma'):
            self.kind = 'mfma'; self.passes = 8 if '32x32x16' in op else 4
            self.W = rs[0]; self.AB = rs[1] | rs[2]; self.C = rs[3]; self.R = self.AB | self.C
        elif op.startswith('v_'):
            self.kind = 'valu'
            self.dpp = '_dpp' in op
            if op.startswith('v_swap') or op.startswith('v_permlane'):
                self.W = U(rs); self.R = U(rs)
            else:
                self.W = rs[0]; self.R = U(rs[1:])
                if op.startswith(('v_fmac','v_writelane')) or self.dpp: self.R |= rs[0]
                if '_co_' in op: self.W |= rs[1]
        elif op.startswith('ds_'):
            self.kind = 'ds'
            if op.startswith(('ds_read','ds_bpermute','ds_permute','ds_swizzle')) or '_rtn' in op: self.W = rs[0]; self.R = U(rs[1:])
            else: self.R = U(rs)
        elif op.startswith(('buffer_','global_')):
            self.kind = 'vmem'
            if 'lds' in mods or '_lds_' in op: self.R = U(rs) | {('s','m0')}; self.ldsdma = True
            elif '_load' in op: self.W = rs[0]; self.R = U(rs[1:])
            else:
                self.R = U(rs)
                if op.endswith(('x3','x4')): self.data = rs[0] if op.startswith('buffer_') else rs[1]
        elif op.startswith('s_'):
            self.kind = 'salu'
            if op.startswith(('s_cbranch','s_branch')): self.target = ops[0]
            elif op.startswith(('s_cmp','s_bitcmp','s_waitcnt','s_nop','s_barrier','s_sleep','s_endpgm','s_setprio')): self.R = U(rs)
            else:
                self.W = rs[0] if rs else set(); self.R = U(rs[1:])
                if 'saveexec' in op: self.W |= {('s','exec')}
        else: raise ValueError('unknown op ' + t)
        self.states = int(ops[0], 0) + 1 if op == 's_nop' else 1
def V(s): return {r for r in s if r[0] in 'va'}
def S(s): return {r for r in s if r[0] == 's'}
def need(p, c):
    n = 0
    if p.kind == 'valu':
        wv = V(p.W); ws = S(p.W)
        if c.kind == 'mfma' and wv & c.R: n = max(n, 2)
        if c.kind == 'valu':
            if (c.dpp or c.op.startswith('v_permlane')) and wv & c.R: n = max(n, 2)
            if c.op.startswith(('v_readfirstlane','v_readlane')) and wv & c.R: n = max(n, 1)
            if ws & c.R: n = max(n, 4 if c.op.startswith(('v_readlane','v_writelane')) else 2)
        if c.kind == 'vmem' and ws & c.R: n = max(n, 5)
        if p.op.startswith(TRANS) and wv & c.R and not c.op.startswith(TRANS): n = max(n, 1)
    if p.kind == 'mfma':
        big = 12 if p.passes == 8 else 8
        mid = 10 if p.passes == 8 else 6
        if c.kind == 'mfma':
            if p.W & c.AB: n = max(n, big)
            if p.W & c.C and not (p.W == c.C and p.passes == c.passes): n = max(n, mid)
            if p.W & c.W and not (p.W == c.C): n = max(n, mid)
        elif c.kind in ('valu','ds','vmem'):
            if p.W & (c.R | c.W): n = max(n, big)
            if c.kind == 'valu' and p.C & c.W: n = max(n, 7 if p.passes == 8 else 3)
    if p.kind == 'salu' and ('s','m0') in p.W and c.kind == 'vmem' and ('s','m0') in c.R: n = max(n, 1)
    if p.kind == 'vmem' and p.data and (p.data & c.W): n = max(n, 2)
    return n
def fix(lines):
    ins = [I(l) for l in lines]
    changed = True; total = 0
    while changed:
        changed = False
        labels = {x.label: k for k, x in enumerate(ins) if x.label}
        srcs = {}
        for k, x in enumerate(ins):
            if x.target: srcs.setdefault(labels[x.target], []).append(k)
        for k, c in enumerate(ins):
            if not c.isinst or c.kind == 'salu': continue
            worst = 0
            stack = [(k-1, 0, True)]; seen = set()
            while stack:
                j, d, fall = stack.pop()
                if j < 0 or d >= 12 or (j, d) in seen: continue
                seen.add((j, d))
                x = ins[j]
                if x.label:
                    for sidx in srcs.get(j, []): stack.append((sidx, d, False))
                    stack.append((j-1, d, True)); continue
                if not x.isinst: stack.append((j-1, d, True)); continue
                if fall and x.op in ('s_branch','s_endpgm'): continue
                worst = max(worst, need(x, c) - d)
                stack.append((j-1, d + x.states, True))
            if worst > 0:
                ins.insert(k, I(f's_nop {worst-1}'))
                total += 1; changed = True
                break
    return [x.text for x in ins], total
```

```python
import sys, math
from asmlib import *
import hazard

HBUF = 0x0
MOD  = 0x2000
QL   = 0x10000
STAT = 0x50000
OUTP = 0x90000
YP   = 0xD0000
PART = 0x200000
STMP = 0xA00000
WSSZ = 0x1000000
KV   = 0
QR   = 131072
QROW = 1008
S1W  = KV + 98304
WUK  = KV + 81920
SYNC = QR + QROW*24 + 992
def pad(i, w): return QROW*i + 4*w
MAXO = QR + 32256 - SYNC
C_S1, C_S2, C_LATE, C_WQ = pad(0,0), pad(0,1), pad(0,2), pad(0,3)
C_Q, C_ISS, C_P, C_PV = pad(1,0), pad(1,1), pad(1,2), pad(1,3)
F_CL = pad(2,0)
C_CTX, C_OUT, C_FFW, C_QP = pad(3,0), pad(3,1), pad(3,2), pad(3,3)
C_U = pad(4,0)
LN1, LN2 = pad(5,0), pad(6,0)
S1P = QR; S2P = QR
PB = QR; LB = QR + 8192; COEF = QR + 8704; CLB = QR + 9728; CTXB = QR + 13824; H2B = QR + 15872; UB = QR + 16896
MOP = KV + 65536
SC = 128**-0.5 * math.log2(math.e)
import struct
def f32(x): return '0x%08x' % struct.unpack('<I', struct.pack('<f', x))[0]
DPPF = 'row_mask:0xf bank_mask:0xf'

class G:
    def __init__(self, dbg=False, opt=None):
        self.a = Asm(); self.dbg = dbg; self.n = 0
        self.o = dict(nb=32, thr=3, nt_w=' nt', nt_kv=' nt', thr_t=3, pf=True)
        if opt: self.o.update(opt)
    def lab(self, p):
        self.n += 1; return f'L_{p}{self.n}'
    def stamp(self, k):
        if self.dbg: self.a(f's_memrealtime s[{64+2*k}:{65+2*k}]')
    def sig(self, off, tmp):
        self.a(f'''v_mov_b32 v{tmp}, 1
        s_mov_b64 exec, 1
        ds_add_u32 v0, v{tmp} offset:{off}
        s_mov_b64 exec, -1''')
    def wait(self, off, target, tmp, sleep=0, addr='v0'):
        L = self.lab('w')
        self.a(f'{L}:')
        if sleep: self.a(f's_sleep {sleep}')
        self.a(f'''ds_read_b32 v{tmp}, {addr} offset:{off}
        s_sub_u32 s3, s3, 1
        s_cbranch_scc1 L_end
        s_waitcnt lgkmcnt(0)
        v_cmp_gt_u32 vcc, {target}, v{tmp}
        s_cbranch_vccnz {L}''')
    def srd(self, s, p, size):
        self.a(f'''s_mov_b32 s{s}, s{p}
        s_mov_b32 s{s+1}, s{p+1}
        s_mov_b32 s{s+2}, {size}
        s_mov_b32 s{s+3}, 0x20000''')
    def check(self, r0, n, tmp):
        a = self.a
        a(f'v_max3_u32 v{tmp}, v{r0}, v{r0+1}, v{r0+2}') if n >= 3 else a(f'v_max_u32 v{tmp}, v{r0}, v{r0+n-1}')
        i = 3
        while i < n:
            if i + 1 < n: a(f'v_max3_u32 v{tmp}, v{tmp}, v{r0+i}, v{r0+i+1}'); i += 2
            else: a(f'v_max_u32 v{tmp}, v{tmp}, v{r0+i}'); i += 1
        a(f'v_cmp_eq_u32 vcc, -1, v{tmp}')
    def budget(self):
        self.a('s_sub_u32 s3, s3, 1\ns_cbranch_scc1 L_end')
    def swaps(self, base):
        for i in range(4):
            for p in range(i+1, 4):
                self.a(f'v_swap_b32 v{base+4*i+p}, v{base+4*p+i}')
    def red32(self, op, r, t):
        a = self.a
        for m in ('quad_perm:[1,0,3,2]', 'quad_perm:[2,3,0,1]', 'row_half_mirror', 'row_mirror'):
            a(f'{op}_dpp v{r}, v{r}, v{r} {m} {DPPF}')
        a(f'v_mov_b32 v{t}, v{r}')
        a(f'v_permlane16_swap_b32 v{r}, v{t}')
        a(f'{op} v{r}, v{r}, v{t}')
    def slotmasks(self, m, lane, t):
        a = self.a
        a(f'''v_and_b32 v{t}, 1, v{lane}
        v_lshlrev_b32 v{t}, 4, v{t}
        s_mov_b32 s38, 0xffff
        v_lshlrev_b32 v{t}, v{t}, s38
        v_bfe_u32 v{t+1}, v{lane}, 1, 2''')
        for i in range(4):
            a(f'v_cmp_eq_u32 vcc, {i}, v{t+1}')
            a(f'v_cndmask_b32 v{m+i}, 0, v{t}, vcc')
    def silu_load(self, raw, t, srd):
        a = self.a
        a(f'''v_and_b32 v{t}, 7, v1
        v_lshlrev_b32 v{t}, 10, v{t}
        v_bfe_u32 v{t+1}, v1, 3, 1
        v_lshl_add_u32 v{t}, v{t+1}, 7, v{t}
        v_lshrrev_b32 v{t+1}, 4, v1
        v_lshl_add_u32 v{t}, v{t+1}, 4, v{t}
        s_lshl_b32 s38, s33, 8
        buffer_load_dwordx4 v[{raw}:{raw+3}], v{t}, s[{srd}:{srd+3}], s38 offen
        buffer_load_dwordx4 v[{raw+4}:{raw+7}], v{t}, s[{srd}:{srd+3}], s38 offen offset:64''')
    def silu_calc(self, raw, t):
        a = self.a
        a(f's_mov_b32 s38, {f32(-math.log2(math.e))}')
        for i in range(8):
            a(f'''v_lshlrev_b32 v{t}, 16, v{raw+i}
            v_and_b32 v{t+1}, 0xffff0000, v{raw+i}
            v_mul_f32 v{t+2}, s38, v{t}
            v_mul_f32 v{t+3}, s38, v{t+1}
            v_exp_f32 v{t+2}, v{t+2}
            v_exp_f32 v{t+3}, v{t+3}
            v_add_f32 v{t+2}, 1.0, v{t+2}
            v_add_f32 v{t+3}, 1.0, v{t+3}
            v_rcp_f32 v{t+2}, v{t+2}
            v_rcp_f32 v{t+3}, v{t+3}
            v_mul_f32 v{t}, v{t}, v{t+2}
            v_mul_f32 v{t+1}, v{t+1}, v{t+3}
            v_cvt_pk_bf16_f32 v{raw+i}, v{t}, v{t+1}''')
        for i in range(8):
            a(f'v_mov_b32_dpp v{raw+8+i}, v{raw+i} row_ror:8 {DPPF}')

    def prologue(self):
        a = self.a
        self.stamp(0)
        a(f'''
        s_cmp_ge_u32 s2, 256
        s_cbranch_scc1 L_exit
        s_load_dwordx16 s[4:19], s[0:1], 0
        s_load_dwordx8 s[20:27], s[0:1], 64
        s_load_dwordx4 s[28:31], s[0:1], 96
        v_lshrrev_b32 v2, 6, v0
        v_and_b32 v1, 63, v0
        v_readfirstlane_b32 s32, v2
        s_and_b32 s36, s2, 7
        s_lshr_b32 s37, s2, 3
        s_and_b32 s34, s37, 7
        s_lshr_b32 s35, s37, 3
        s_lshl_b32 s35, s35, 3
        s_add_u32 s35, s35, s36
        s_and_b32 s33, s32, 3
        s_mov_b32 s3, 0x400000
        v_mov_b32 v0, {SYNC}
        ''')
        if self.o['pf']:
            a(f'''
            s_getpc_b64 s[52:53]
            L_pc:
            s_mul_i32 s38, s37, 12
            s_add_u32 s38, s38, s32
            s_lshl_b32 s38, s38, 7
            s_cmp_ge_u32 s38, L_codeend-L_pc
            s_cbranch_scc1 L_nopf
            v_mov_b32 v2, s38
            s_mov_b64 exec, 1
            global_load_dword v167, v2, s[52:53]
            s_mov_b64 exec, -1
            L_nopf:
            ''')
        a(f'''
        s_lshl_b32 s54, s34, 5
        s_add_u32 s54, s54, s35
        s_lshl_b32 s54, s54, 10      ; (b*32+j)*1024
        s_lshl_b32 s55, s36, 2
        s_add_u32 s55, s55, s37
        s_waitcnt lgkmcnt(0)
        ''')
        self.srd(40, 30, WSSZ)
        a('''
        s_cmp_ge_u32 s32, 8
        s_cbranch_scc1 L_C
        s_cmp_ge_u32 s32, 4
        s_cbranch_scc1 L_B
        ''')

    def groupA(self):
        a = self.a; o = self.o
        a('L_A:')
        a(f'''
        v_mov_b32 v8, -1
        v_mov_b32 v9, -1
        v_mov_b32 v10, -1
        v_mov_b32 v11, -1
        v_lshlrev_b32 v2, 4, v1
        s_cmp_lg_u32 s33, 0
        s_cbranch_scc1 L_A_i1
        v_cmp_lt_u32 vcc, 4, v1
        v_mul_u32_u24 v3, {QROW}, v1
        v_cndmask_b32 v4, 0, v8, vcc
        v_add_u32 v3, v3, v0
        v_mov_b32 v5, v4
        v_mov_b32 v6, v4
        v_mov_b32 v7, v4
        v_add_u32 v12, v2, v0
        s_mov_b64 exec, 0xff
        ds_write_b128 v3, v[4:7]
        s_mov_b32 exec_lo, -1
        ds_write_b128 v12, v[8:11] offset:{MAXO}
        s_mov_b64 exec, -1
        L_A_i1:
        s_cmp_lg_u32 s33, 1
        s_cbranch_scc1 L_A_i2
        s_cmp_ge_u32 s2, 32
        s_cbranch_scc1 L_A_i2
        s_lshl_b32 s38, s55, 13
        s_add_u32 s38, s38, {QL}
        s_add_u32 s39, s38, 4096
        ''')
        for i in range(4): a(f'buffer_store_dwordx4 v[8:11], v2, s[40:43], s38 offen offset:{1024*i} sc1')
        for i in range(4): a(f'buffer_store_dwordx4 v[8:11], v2, s[40:43], s39 offen offset:{1024*i} sc1')
        a(f'''
        s_lshl_b32 s38, s55, 8
        s_mov_b64 exec, 0xffff
        buffer_store_dwordx4 v[8:11], v2, s[40:43], s38 offen sc1
        s_lshl_b32 s38, s55, 3
        v_mov_b32 v3, s38
        s_mov_b64 exec, 1
        s_waitcnt vmcnt(0)
        global_store_dword v3, v8, s[28:29] sc1
        s_mov_b64 exec, -1
        L_A_i2:
        ''')
        self.srd(44, 6, 33554432)
        a(f'''
        v_lshrrev_b32 v4, 3, v1            ; rho
        v_bfe_u32 v5, v4, 1, 1
        v_lshlrev_b32 v5, 2, v5
        v_bfe_u32 v6, v4, 2, 1
        v_or_b32 v5, v5, v6
        v_and_b32 v6, 7, v1
        v_xor_b32 v5, v5, v6
        v_lshlrev_b32 v5, 4, v5
        v_lshl_add_u32 v2, v4, 10, v5      ; voffE
        v_xor_b32 v3, 32, v2               ; voffO
        s_lshl_b32 s48, s54, 7             ; (b*4096+j*128)*1024
        s_lshl_b32 s38, s33, 15
        s_add_u32 s48, s48, s38
        s_lshl_b32 s49, s33, 12
        s_waitcnt lgkmcnt(0)
        s_barrier
        ''')
        self.wait(C_WQ, 4, 8, sleep=1)
        self.stamp(1)
        a(f'''
        s_mov_b32 s50, 0
        L_A_dma:
        s_cmp_lg_u32 s50, 5
        s_cbranch_scc1 L_A_dma1
        ''')
        self.wait(C_LATE, 4, 8)
        a('L_A_dma1:')
        for kb in range(4):
            a(f'''s_add_u32 m0, s49, {kb*1024}
            s_add_u32 s38, s48, {kb*8192}
            buffer_load_dwordx4 v{2+(kb&1)}, s[44:47], s38 offen{o['nt_kv']} lds
            s_waitcnt vmcnt({o['thr']})''')
        a(f'''
        s_add_u32 s49, s49, 16384
        s_add_u32 s48, s48, 128
        s_add_u32 s50, s50, 1
        s_cmp_lt_u32 s50, 8
        s_cbranch_scc1 L_A_dma
        ''')
        self.sig(C_ISS, 8)
        self.stamp(2)
        a(f'''
        v_and_b32 v9, 31, v1
        v_lshrrev_b32 v10, 5, v1           ; h
        v_bfe_u32 v4, v9, 1, 1
        v_lshlrev_b32 v4, 2, v4
        v_bfe_u32 v5, v9, 2, 2
        v_or_b32 v4, v4, v5                ; f
        v_xor_b32 v4, v4, v10
        v_lshlrev_b32 v4, 4, v4
        v_lshl_add_u32 v4, v9, 7, v4
        s_lshl_b32 s38, s33, 12
        v_add_u32 v4, s38, v4
        v_xor_b32 v5, 32, v4
        v_xor_b32 v6, 64, v4
        v_xor_b32 v7, 0x60, v4
        v_mul_u32_u24 v8, {QROW}, v9
        v_lshl_add_u32 v8, v10, 4, v8
        v_add_u32 v8, {QR}, v8
        v_lshlrev_b32 v11, 10, v9
        v_lshl_add_u32 v11, v10, 4, v11
        s_lshl_b32 s38, s34, 15
        s_add_u32 s38, s38, {QL}
        ''')
        self.wait(C_Q, 4, 16)
        self.stamp(3)
        a('buffer_load_dwordx4 v[12:15], v11, s[40:43], s38 offen offset:992 sc1')
        D = 4
        def rd(t):
            cb = t >> 2
            if t == 16:
                for u in range(4): a(f'v_add_u32 v{4+u}, 0x10000, v{4+u}')
            if t == 28: a('s_waitcnt vmcnt(0)')
            a(f'ds_read_b128 v[{32+4*(t%D)}:{35+4*(t%D)}], v{4+(t&3)} offset:{(cb&3)*16384}')
            if t < 31: a(f'ds_read_b128 v[{48+4*(t%D)}:{51+4*(t%D)}], v8 offset:{32*t}')
        for t in range(D-1): rd(t)
        for t in range(32):
            if t + D - 1 < 32: rd(t + D - 1)
            out = sum((2 if u < 31 else 1) for u in range(t+1, min(t+D, 32)))
            a(f's_waitcnt lgkmcnt({out})')
            q = f'v[{48+4*(t%D)}:{51+4*(t%D)}]' if t < 31 else 'v[12:15]'
            a(f'v_mfma_f32_32x32x16_bf16 v[16:31], v[{32+4*(t%D)}:{35+4*(t%D)}], {q}, ' + ('0' if t == 0 else 'v[16:31]'))
        a(f'''
        v_bfe_u32 v32, v1, 2, 2            ; r'
        v_lshl_add_u32 v33, v10, 2, v32    ; rho = 4h + r'
        v_lshrrev_b32 v32, 1, v32
        v_lshl_or_b32 v32, v32, 2, v10     ; f (nu=0)
        v_bfe_u32 v34, v1, 4, 1
        v_bfe_u32 v35, v1, 1, 1
        v_lshl_or_b32 v34, v34, 1, v35
        v_xor_b32 v32, v32, v34
        v_lshlrev_b32 v32, 4, v32
        v_lshl_add_u32 v32, v33, 7, v32
        v_and_b32 v33, 1, v1
        v_lshl_add_u32 v32, v33, 3, v32
        s_mul_i32 s38, s33, {32768+4096}
        v_add_u32 v4, s38, v32
        v_xor_b32 v5, {1024+32}, v4
        v_xor_b32 v6, 64, v4
        v_xor_b32 v7, {1024+32+64}, v4
        v_lshl_add_u32 v11, v9, 4, v0
        s_lshl_b32 s38, s33, 2
        v_add_u32 v12, s38, v11
        ''')
        self.stamp(4)
        a('v_max3_f32 v13, v16, v17, v18')
        for r in range(19, 31, 2): a(f'v_max3_f32 v13, v13, v{r}, v{r+1}')
        a(f'''v_max_f32 v13, v13, v31
        v_mov_b32 v14, v13
        v_permlane32_swap_b32 v13, v14
        v_max_f32 v13, v13, v14
        ds_write_b32 v12, v13 offset:{MAXO}
        L_A_mx:
        ds_read_b128 v[32:35], v11 offset:{MAXO}''')
        self.budget()
        a('s_waitcnt lgkmcnt(0)')
        self.check(32, 4, 36)
        a(f'''s_cbranch_vccnz L_A_mx
        v_max3_f32 v13, v32, v33, v34
        v_max_f32 v13, v13, v35''')
        def rv(i):
            kt, u, ct = i >> 3, (i >> 2) & 1, i & 3
            if i and i % 8 == 0:
                x = (kt ^ (kt-1)) * 4096
                for r in range(4): a(f'v_xor_b32 v{4+r}, {x}, v{4+r}')
            B = 32 + 4*(i % 8)
            off = (ct >> 1)*16384 + u*2048
            a(f'ds_read_b64_tr_b16 v[{B}:{B+1}], v{4+2*(ct&1)} offset:{off}')
            a(f'ds_read_b64_tr_b16 v[{B+2}:{B+3}], v{5+2*(ct&1)} offset:{off}')
        DV = 5
        for i in range(DV-1): rv(i)
        for r in range(16): a(f'v_sub_f32 v{16+r}, v{16+r}, v13')
        for r in range(16): a(f'v_exp_f32 v{16+r}, v{16+r}')
        for r in range(8): a(f'v_cvt_pk_bf16_f32 v{128+r}, v{16+2*r}, v{17+2*r}')
        a(f'''v_lshlrev_b32 v8, 4, v1
        s_lshl_b32 s38, s33, 11
        s_add_u32 s38, s38, {PB}
        v_add_u32 v8, s38, v8
        ds_write_b128 v8, v[128:131]
        ds_write_b128 v8, v[132:135] offset:1024''')
        for k in (8, 4, 2, 1):
            for r in range(k): a(f'v_add_f32 v{16+r}, v{16+r}, v{16+k+r}')
        a(f'''v_mov_b32 v14, v16
        v_permlane32_swap_b32 v16, v14
        v_add_f32 v16, v16, v14
        v_add_u32 v12, {LB - SYNC}, v12
        ds_write_b32 v12, v16''')
        self.sig(C_P, 14)
        self.stamp(5)
        for i in range(32):
            kt, u, ct = i >> 3, (i >> 2) & 1, i & 3
            if i == 4:
                self.wait(C_P, 4, 14)
                for k in range(1, 4):
                    a(f'v_xor_b32 v15, {k*2048}, v8')
                    a(f'ds_read_b128 v[{128+8*k}:{131+8*k}], v15')
                    a(f'ds_read_b128 v[{132+8*k}:{135+8*k}], v15 offset:1024')
                a(f'v_add_u32 v11, {LB - SYNC}, v11')
                a('ds_read_b128 v[16:19], v11')
            if i + DV - 1 < 32: rv(i + DV - 1)
            out = 2*(min(i+DV, 32) - (i+1))
            if i < 4: out = min(out, 2*(i+1))
            if 4 <= i < 8: out = 15
            if out < 15: a(f's_waitcnt lgkmcnt({out})')
            B = 32 + 4*(i % 8); P = 128 + 8*kt + 4*u; A = 64 + 16*ct
            a(f'v_mfma_f32_32x32x16_bf16 v[{A}:{A+15}], v[{P}:{P+3}], v[{B}:{B+3}], ' + ('0' if i < 4 else f'v[{A}:{A+15}]'))
        self.sig(C_PV, 14)
        self.stamp(6)
        a(f'''
        v_add_f32 v16, v16, v17
        v_add_f32 v18, v18, v19
        v_add_f32 v14, v16, v18            ; v13 = m, v14 = l
        v_bfe_u32 v2, v1, 4, 1
        v_lshl_add_u32 v2, v10, 2, v2
        v_lshlrev_b32 v2, 15, v2
        v_and_b32 v3, 15, v1
        v_lshl_add_u32 v2, v3, 4, v2
        s_lshl_b32 s48, s34, 20
        s_lshl_b32 s38, s35, 10
        s_add_u32 s48, s48, s38
        s_lshl_b32 s38, s33, 8
        s_add_u32 s48, s48, s38
        s_add_u32 s48, s48, {PART}
        ''')
        for k in range(8):
            r = 2*k; T = 128 + 4*k
            a(f'''v_cvt_pk_bf16_f32 v{T}, v{64+r}, v{80+r}
            v_cvt_pk_bf16_f32 v{T+1}, v{65+r}, v{81+r}
            v_cvt_pk_bf16_f32 v{T+2}, v{96+r}, v{112+r}
            v_cvt_pk_bf16_f32 v{T+3}, v{97+r}, v{113+r}
            s_add_u32 s38, s48, {((r & 3) + 8*(r >> 2)) << 15}
            v_permlane16_swap_b32 v{T}, v{T+1}
            v_permlane16_swap_b32 v{T+2}, v{T+3}
            buffer_store_dwordx4 v[{T}:{T+3}], v2, s[40:43], s38 offen sc1''')
        a(f'''
        v_mov_b32 v12, v13
        v_mov_b32 v13, v14
        v_lshlrev_b32 v4, 3, v9
        s_lshl_b32 s38, s33, 8
        s_add_u32 s49, s54, s38
        s_add_u32 s49, s49, {STAT}
        v_lshlrev_b32 v5, 10, v9
        s_lshl_b32 s50, s34, 15
        s_add_u32 s50, s50, s38
        s_lshl_b32 s39, s35, 3
        s_add_u32 s50, s50, s39
        s_add_u32 s50, s50, {STAT}
        v_lshrrev_b32 v6, 4, v1            ; g
        v_lshlrev_b32 v7, 13, v6
        v_lshl_add_u32 v7, v3, 4, v7
        s_lshl_b32 s51, s54, 5
        s_add_u32 s51, s51, s38
        s_add_u32 s51, s51, {PART}
        s_add_u32 s52, s51, 4096
        ''')
        self.slotmasks(20, 1, 16)
        a(f'''
        s_lshl_b32 s38, s33, 8
        s_add_u32 s38, s38, {COEF}
        v_lshl_add_u32 v24, v1, 2, s38
        v_bfe_u32 v16, v1, 3, 1
        v_lshlrev_b32 v16, 7, v16
        v_lshl_add_u32 v16, v6, 5, v16
        v_add_u32 v25, s38, v16
        v_bfe_u32 v16, v1, 4, 1
        v_lshlrev_b32 v16, 4, v16
        v_lshl_add_u32 v16, v3, 5, v16
        v_lshl_add_u32 v16, v10, 3, v16    ; 4*pos
        s_lshr_b32 s38, s34, 1
        s_lshl_b32 s38, s38, 7
        s_and_b32 s39, s34, 1
        s_lshl_b32 s39, s39, 4
        s_or_b32 s38, s38, s39
        v_xor_b32 v16, s38, v16
        s_lshl_b32 s38, s33, 10
        s_add_u32 s38, s38, {CLB}
        v_add_u32 v26, s38, v16
        s_lshl_b32 s38, s33, 2
        v_add_u32 v27, s38, v0
        s_waitcnt vmcnt(0)
        s_mov_b32 exec_hi, 0
        buffer_store_dwordx2 v[12:13], v4, s[40:43], s49 offen sc1
        s_mov_b64 exec, -1
        ''')
        self.stamp(7)
        self.srd(44, 22, 8192)
        a('s_cmp_lt_u32 s35, 28\ns_cbranch_scc1 L_A_st')
        self.silu_load(128, 16, 44)
        a('L_A_st:')
        a('buffer_load_dwordx2 v[12:13], v5, s[40:43], s50 offen sc1')
        self.budget()
        a(f'''s_waitcnt vmcnt(0)
        v_cmp_eq_u32 vcc, -1, v13
        s_cbranch_vccnz L_A_st''')
        self.stamp(8)
        for t in range(8):
            a(f'buffer_load_dwordx4 v[{32+4*t}:{35+4*t}], v7, s[40:43], s{51+(t>>2)} offen offset:{(t&3)*1024} sc1')
        a('v_mov_b32 v14, v12')
        self.red32('v_max_f32', 14, 15)
        a(f'''v_sub_f32 v12, v12, v14
        v_exp_f32 v12, v12
        v_mul_f32 v14, v12, v13''')
        self.red32('v_add_f32', 14, 15)
        a(f'''v_rcp_f32 v14, v14
        v_cmp_gt_u32 vcc, 32, v1
        v_mul_f32 v12, v12, v14
        v_cvt_pk_bf16_f32 v13, v12, v12
        v_and_b32 v14, 0xffff0000, v13
        v_sub_f32 v12, v12, v14
        v_cvt_pk_bf16_f32 v12, v12, v12
        v_cndmask_b32 v12, v12, v13, vcc
        ds_write_b32 v24, v12
        ds_read_b128 v[12:15], v25
        ds_read_b128 v[16:19], v25 offset:16
        s_waitcnt lgkmcnt(0)''')
        for t in range(8):
            for i in range(4): a(f'v_and_b32 v{64+4*t+i}, v{12+t}, v{20+i}')
        for t in range(8):
            a(f's_waitcnt vmcnt({7-t})')
            a(f'v_mfma_f32_16x16x32_bf16 v[28:31], v[{64+4*t}:{67+4*t}], v[{32+4*t}:{35+4*t}], ' + ('0' if t == 0 else 'v[28:31]'))
        a(f'''v_mov_b32 v16, 1
        v_permlane32_swap_b32 v28, v30
        v_permlane32_swap_b32 v29, v31
        v_add_f32 v28, v28, v30
        v_add_f32 v29, v29, v31
        v_cvt_pk_bf16_f32 v12, v28, 0
        v_cvt_pk_bf16_f32 v13, v29, 0
        v_cvt_pk_bf16_f32 v14, 0, v28
        v_cvt_pk_bf16_f32 v15, 0, v29
        ds_write2_b64 v26, v[12:13], v[14:15] offset0:0 offset1:64
        ds_write_b32 v27, v16 offset:{F_CL}''')
        self.stamp(9)
        a(f'''
        s_mov_b32 s38, 0x3f803f80
        v_and_b32 v20, s38, v20
        v_and_b32 v21, s38, v21
        v_and_b32 v22, s38, v22
        v_and_b32 v23, s38, v23
        v_bfe_u32 v12, v1, 2, 2            ; r'
        v_lshl_add_u32 v13, v6, 3, v12     ; 8g + r'
        v_lshrrev_b32 v14, 1, v12
        v_and_b32 v15, 1, v6
        v_lshl_or_b32 v14, v15, 1, v14     ; f1
        v_lshlrev_b32 v14, 5, v14
        v_lshl_add_u32 v14, v13, 7, v14
        v_and_b32 v16, 3, v1
        v_lshl_add_u32 v14, v16, 3, v14
        s_lshl_b32 s38, s33, 14
        v_add_u32 v24, s38, v14
        v_xor_b32 v25, 32, v24
        v_xor_b32 v26, 64, v24
        v_xor_b32 v27, 0x60, v24
        v_lshl_or_b32 v14, v15, 2, v12     ; f2
        v_lshlrev_b32 v14, 5, v14
        v_lshl_add_u32 v14, v13, 10, v14
        v_lshl_add_u32 v14, v16, 3, v14
        s_lshl_b32 s38, s33, 8
        s_add_u32 s38, s38, 65536
        v_add_u32 v2, s38, v14
        ''')
        a('s_cmp_lt_u32 s35, 28\ns_cbranch_scc1 L_A_w1')
        self.silu_calc(128, 12)
        a('L_A_w1:')
        self.wait(C_FFW, 8, 12, sleep=1)
        for s in range(4):
            for T in range(4):
                B = 64 + 16*s + 4*T
                a(f'ds_read_b64_tr_b16 v[{B}:{B+1}], v{24+T} offset:{s*4096}')
                a(f'ds_read_b64_tr_b16 v[{B+2}:{B+3}], v{24+T} offset:{s*4096+512}')
            a('s_waitcnt lgkmcnt(0)')
        a('s_cmp_lt_u32 s35, 28\ns_cbranch_scc1 L_A_F')
        for s in range(4):
            for T in range(4):
                B = 64 + 16*s + 4*T
                a(f'v_mfma_f32_16x16x32_bf16 v[{32+4*T}:{35+4*T}], v[{B}:{B+3}], v[{128+4*s}:{131+4*s}], ' + ('0' if s == 0 else f'v[{32+4*T}:{35+4*T}]'))
        a(f'''s_lshl_b32 s38, s33, 12
        s_add_u32 s38, s38, {MOP}
        v_lshl_add_u32 v12, v1, 4, s38''')
        for T in range(4): a(f'ds_write_b128 v12, v[{32+4*T}:{35+4*T}] offset:{T*1024}')
        self.sig(C_U, 13)
        a(f'''s_sub_u32 s38, s35, 28
        s_cmp_lg_u32 s38, s33
        s_cbranch_scc1 L_end
        v_and_b32 v12, 0x37, v1
        v_lshlrev_b32 v12, 4, v12
        v_bfe_u32 v13, v1, 3, 1
        v_lshl_add_u32 v12, v13, 11, v12
        v_add_u32 v12, {MOP}, v12
        v_and_b32 v14, 7, v1
        v_lshlrev_b32 v14, 10, v14
        v_lshl_add_u32 v14, v13, 6, v14
        v_lshl_add_u32 v14, v6, 4, v14
        s_lshl_b32 s38, s33, 13
        s_lshl_b32 s39, s34, 7
        s_add_u32 s38, s38, s39
        s_add_u32 s38, s38, {MOD}''')
        self.wait(C_U, 4, 13)
        for w in range(4):
            for T in range(2): a(f'ds_read_b128 v[{32+8*w+4*T}:{35+8*w+4*T}], v12 offset:{w*4096+T*1024}')
        a('s_waitcnt lgkmcnt(0)')
        for r in range(8):
            a(f'v_add_f32 v{32+r}, v{32+r}, v{40+r}\nv_add_f32 v{48+r}, v{48+r}, v{56+r}')
        for r in range(8): a(f'v_add_f32 v{32+r}, v{32+r}, v{48+r}')
        for r in range(4): a(f'v_cvt_pk_bf16_f32 v{32+r}, v{32+2*r}, v{33+2*r}')
        a('buffer_store_dwordx4 v[32:35], v14, s[40:43], s38 offen sc1')
        a('L_A_F:')
        self.srd(44, 4, 8192)
        a(f'''
        v_and_b32 v12, 1, v6
        v_lshlrev_b32 v13, 3, v12
        v_lshl_add_u32 v13, v3, 4, v13
        s_lshl_b32 s38, s34, 10
        s_lshl_b32 s39, s33, 8
        s_add_u32 s48, s38, s39
        buffer_load_dwordx2 v[128:129], v13, s[44:47], s48 offen
        v_and_b32 v14, 12, v3
        v_lshlrev_b32 v14, 4, v14          ; 128*blk + 64*(T>>1)
        v_and_b32 v15, 1, v3
        v_lshl_add_u32 v14, v15, 5, v14
        v_lshl_add_u32 v14, v12, 4, v14
        v_bfe_u32 v15, v3, 1, 1
        v_lshl_add_u32 v14, v15, 3, v14
        s_add_u32 s49, s48, {MOD}
        s_add_u32 s50, s49, 8192
        s_add_u32 s51, s49, 16384
        s_add_u32 s52, s49, 24576
        L_A_md:
        buffer_load_dwordx2 v[130:131], v14, s[40:43], s49 offen sc1
        buffer_load_dwordx2 v[132:133], v14, s[40:43], s50 offen sc1
        buffer_load_dwordx2 v[134:135], v14, s[40:43], s51 offen sc1
        buffer_load_dwordx2 v[136:137], v14, s[40:43], s52 offen sc1''')
        self.budget()
        a('s_waitcnt vmcnt(0)')
        self.check(130, 8, 15)
        a('s_cbranch_vccnz L_A_md')
        for k in range(5):
            for i in range(2):
                a(f'v_lshlrev_b32 v{140+4*k+2*i}, 16, v{128+2*k+i}\nv_and_b32 v{141+4*k+2*i}, 0xffff0000, v{128+2*k+i}')
        for i in range(4): a(f'v_add_f32 v{152+i}, 1.0, v{152+i}')
        a(f'''
        s_lshl_b32 s51, s34, 15
        s_add_u32 s51, s51, s39
        s_add_u32 s53, s51, {YP}
        s_add_u32 s51, s51, {OUTP}
        s_add_u32 s52, s51, 4096
        s_add_u32 s38, s39, {H2B}
        v_add_u32 v24, s38, v13            ; h2 write
        v_lshl_add_u32 v25, v6, 4, s38     ; h2 read
        v_mul_u32_u24 v26, {QROW}, v10
        s_lshl_b32 s38, s33, 2
        v_add3_u32 v26, v26, v0, s38
        s_add_u32 s38, s39, {UB}
        v_lshl_add_u32 v27, v6, 4, s38     ; u write
        v_and_b32 v12, 3, v1
        v_lshlrev_b32 v12, 8, v12
        v_bfe_u32 v15, v1, 3, 1
        v_lshl_add_u32 v12, v15, 7, v12
        v_bfe_u32 v15, v1, 2, 1
        v_lshl_add_u32 v12, v15, 4, v12
        v_lshl_add_u32 v12, v6, 5, v12
        v_add_u32 v4, {UB}, v12            ; u read
        v_lshlrev_b32 v5, 4, v3
        ''')
        self.wait(C_OUT, 4, 12)
        self.stamp(10)
        a('L_A_h4:')
        for t in range(8):
            a(f'buffer_load_dwordx4 v[{32+4*t}:{35+4*t}], v7, s[40:43], s{51+(t>>2)} offen offset:{(t&3)*1024} sc1')
        self.budget()
        for t in range(8):
            a(f's_waitcnt vmcnt({7-t})')
            a(f'v_mfma_f32_16x16x32_bf16 v[28:31], v[20:23], v[{32+4*t}:{35+4*t}], ' + ('0' if t == 0 else 'v[28:31]'))
            r = 32 + 4*t
            if t == 0: a(f'v_max3_u32 v12, v{r}, v{r+1}, v{r+2}\nv_max_u32 v12, v12, v{r+3}')
            else: a(f'v_max3_u32 v12, v12, v{r}, v{r+1}\nv_max3_u32 v12, v12, v{r+2}, v{r+3}')
        a('v_cmp_eq_u32 vcc, -1, v12\ns_cbranch_vccnz L_A_h4')
        self.stamp(11)
        for i in range(4): a(f'v_fma_f32 v{28+i}, v{28+i}, v{144+i}, v{140+i}')
        a('s_cmp_ge_u32 s35, 28\ns_cbranch_scc1 L_A_fin')
        a(f'''
        v_add_f32 v12, v28, v29
        v_mul_f32 v13, v28, v28
        v_add_f32 v14, v30, v31
        v_fmac_f32 v13, v29, v29
        v_cmp_gt_u32 vcc, 32, v1
        v_fmac_f32 v13, v30, v30
        v_add_f32 v12, v12, v14
        v_fmac_f32 v13, v31, v31
        v_cndmask_b32 v12, v13, v12, vcc''')
        self.red32('v_add_f32', 12, 13)
        a(f'''ds_write_b32 v26, v12 offset:{LN1}
        L_A_ln:
        ds_read_b128 v[12:15], v0 offset:{LN1}
        ds_read_b128 v[16:19], v0 offset:{LN2}''')
        self.budget()
        a('s_waitcnt lgkmcnt(0)')
        self.check(12, 8, 32)
        a(f'''s_cbranch_vccnz L_A_ln
        v_add_f32 v12, v12, v13
        v_add_f32 v16, v16, v17
        v_add_f32 v14, v14, v15
        v_add_f32 v18, v18, v19
        s_mov_b32 s38, {f32(1/512)}
        v_add_f32 v12, v12, v14
        v_add_f32 v16, v16, v18
        v_mul_f32 v12, s38, v12
        v_mul_f32 v16, s38, v16
        v_fma_f32 v16, -v12, v12, v16
        v_max_f32 v16, 0, v16
        v_add_f32 v16, {f32(1e-5)}, v16
        v_rsq_f32 v16, v16''')
        for i in range(4): a(f'v_sub_f32 v{28+i}, v{28+i}, v12')
        for i in range(4): a(f'v_mul_f32 v{152+i}, v{152+i}, v16')
        for i in range(4): a(f'v_fma_f32 v{28+i}, v{28+i}, v{152+i}, v{148+i}')
        a(f'''v_cvt_pk_bf16_f32 v28, v28, v29
        v_cvt_pk_bf16_f32 v29, v30, v31
        ds_write_b64 v24, v[28:29]''')
        for s in range(4): a(f'ds_read_b128 v[{128+4*s}:{131+4*s}], v25 offset:{64*s}')
        for T in range(1, 8): a(f'v_xor_b32 v{12+T}, {32*T}, v2')
        for s in range(4):
            a(f's_waitcnt lgkmcnt({3-s})')
            for T in range(4):
                B = 64 + 16*s + 4*T
                a(f'v_mfma_f32_16x16x32_bf16 v[{32+4*T}:{35+4*T}], v[{B}:{B+3}], v[{128+4*s}:{131+4*s}], ' + ('0' if s == 0 else f'v[{32+4*T}:{35+4*T}]'))
        def w2rd(s, T):
            B = 64 + 32*s + 4*T; ad = 2 if T == 0 else 12 + T
            a(f'ds_read_b64_tr_b16 v[{B}:{B+1}], v{ad} offset:{s*32768}')
            a(f'ds_read_b64_tr_b16 v[{B+2}:{B+3}], v{ad} offset:{s*32768+4096}')
        for T in range(4): w2rd(0, T)
        a('s_mov_b32 s38, 0x00010001\ns_mov_b32 s39, 0x00010001\ns_mov_b64 exec, s[38:39]')
        for T in range(4): a(f'ds_write_b128 v27, v[{32+4*T}:{35+4*T}] offset:{64*T}')
        a('s_mov_b64 exec, -1')
        self.sig(C_U, 12)
        a('s_waitcnt lgkmcnt(6)')
        for T in range(4, 8): w2rd(0, T)
        a('s_waitcnt lgkmcnt(4)')
        for T in range(4): w2rd(1, T)
        a('s_waitcnt lgkmcnt(4)')
        for T in range(4, 8): w2rd(1, T)
        self.wait(C_U, 4, 12)
        a('ds_read_b128 v[28:31], v4\ns_waitcnt lgkmcnt(0)')
        for m in ('quad_perm:[1,0,3,2]', 'quad_perm:[2,3,0,1]'):
            for i in range(4): a(f'v_add_f32_dpp v{28+i}, v{28+i}, v{28+i} {m} {DPPF}')
        for i in range(4): a(f'v_max_f32 v{28+i}, 0, v{28+i}')
        a('v_cvt_pk_bf16_f32 v28, v28, v29\nv_cvt_pk_bf16_f32 v29, v30, v31')
        for k in range(4):
            for i in range(2): a(f'v_mov_b32_dpp v{128+2*k+i}, v{28+i} row_newbcast:{4*k} {DPPF}')
        for s in range(2):
            for T in range(8):
                B = 64 + 32*s + 4*T
                a(f'v_mfma_f32_16x16x32_bf16 v[{32+4*T}:{35+4*T}], v[{128+4*s}:{131+4*s}], v[{B}:{B+3}], ' + ('0' if s == 0 else f'v[{32+4*T}:{35+4*T}]'))
        a(f's_lshl_b32 s38, s35, 10\ns_add_u32 s38, s38, s53')
        for k in range(4): a(f'v_cvt_pk_bf16_f32 v{28+k}, v{32+8*k}, v{36+8*k}')
        a(f'''s_mov_b64 exec, 0xffff
        buffer_store_dwordx4 v[28:31], v5, s[40:43], s38 offen sc1''')
        self.stamp(12)
        a('s_branch L_end')
        a('L_A_fin:')
        self.srd(44, 26, 8192)
        a(f'''
        v_and_b32 v12, 7, v1
        v_lshlrev_b32 v13, 1, v12
        v_lshrrev_b32 v14, 1, v6
        v_add_u32 v13, v13, v14
        v_and_b32 v14, 1, v6
        v_lshl_add_u32 v13, v14, 4, v13
        v_lshlrev_b32 v13, 2, v13''')
        for i in range(4):
            a(f'ds_bpermute_b32 v{140+i}, v13, v{28+i}\nds_bpermute_b32 v{144+i}, v13, v{156+i}')
        a(f'''
        v_lshlrev_b32 v4, 5, v12
        v_lshl_add_u32 v4, v6, 3, v4
        v_mul_u32_u24 v7, 7168, v6
        v_lshl_add_u32 v7, v3, 4, v7
        s_add_u32 s52, s53, 4096
        s_waitcnt lgkmcnt(0)
        L_A_h5:''')
        for t in range(7):
            a(f'buffer_load_dwordx4 v[{32+4*t}:{35+4*t}], v7, s[40:43], s{53-(t>>2)} offen offset:{(t&3)*1024} sc1')
        self.budget()
        for t in range(7):
            a(f's_waitcnt vmcnt({6-t})')
            a(f'v_mfma_f32_16x16x32_bf16 v[28:31], v[{32+4*t}:{35+4*t}], v[20:23], ' + ('0' if t == 0 else 'v[28:31]'))
            r = 32 + 4*t
            if t == 0: a(f'v_max3_u32 v12, v{r}, v{r+1}, v{r+2}\nv_max_u32 v12, v12, v{r+3}')
            else: a(f'v_max3_u32 v12, v12, v{r}, v{r+1}\nv_max3_u32 v12, v12, v{r+2}, v{r+3}')
        a('v_cmp_eq_u32 vcc, -1, v12\ns_cbranch_vccnz L_A_h5')
        self.stamp(12)
        for i in range(4): a(f'v_fma_f32 v{28+i}, v{28+i}, v{144+i}, v{140+i}')
        a(f'''v_cvt_pk_bf16_f32 v28, v28, v29
        v_cvt_pk_bf16_f32 v29, v30, v31
        s_mov_b32 s38, 0x00ff00ff
        s_mov_b32 s39, 0x00ff00ff
        s_mov_b64 exec, s[38:39]
        buffer_store_dwordx2 v[28:29], v4, s[44:47], s48 offen''')
        self.stamp(13)
        a('s_branch L_end')

    def ffn_dma(self, tag):
        a = self.a; o = self.o
        a(f'''
        s_sub_u32 s56, s32, 4              ; omega
        s_cmp_lt_u32 s35, 28
        s_cselect_b32 s48, s18, s24
        s_cselect_b32 s49, s19, s25
        s_movk_i32 s57, 6144
        s_cselect_b32 s57, 3584, s57
        s_mul_i32 s50, s57, 512
        s_mov_b32 s51, 0x20000
        s_lshl_b32 s58, s35, 7
        s_sub_u32 s38, s35, 26
        s_lshl_b32 s38, s38, 10
        s_lshl_b32 s39, s34, 7
        s_add_u32 s38, s38, s39
        s_cmp_lt_u32 s35, 28
        s_cselect_b32 s58, s58, s38
        v_lshrrev_b32 v4, 3, v1
        v_mul_lo_u32 v5, v4, s57
        v_bfe_u32 v4, v4, 1, 1
        s_and_b32 s38, s56, 1
        s_lshl_b32 s38, s38, 1
        v_or_b32 v4, s38, v4
        v_lshlrev_b32 v4, 1, v4
        v_and_b32 v6, 7, v1
        v_xor_b32 v4, v4, v6
        v_lshl_add_u32 v4, v4, 4, v5       ; W1 voffset
        s_lshl_b32 s38, s56, 5
        v_lshlrev_b32 v5, 4, v1
        v_xor_b32 v5, s38, v5              ; W2 voffset
        s_lshl_b32 s57, s57, 3
        ''')
        self.wait(C_PV, 4, 6, sleep=1)
        a(f'''s_mov_b32 s59, 0
        L_{tag}_f1:
        s_xor_b32 s38, s59, s34
        s_lshl_b32 s38, s38, 3
        s_add_u32 s38, s38, s56
        s_lshl_b32 m0, s38, 10
        s_mul_i32 s38, s38, s57
        s_add_u32 s38, s38, s58
        buffer_load_dwordx4 v4, s[48:51], s38 offen{o['nt_w']} lds
        s_waitcnt vmcnt({o['thr_t']})
        s_add_u32 s59, s59, 1
        s_cmp_lt_u32 s59, 8
        s_cbranch_scc1 L_{tag}_f1
        s_cmp_ge_u32 s35, 28
        s_cbranch_scc1 L_{tag}_f3
        s_mov_b32 s48, s20
        s_mov_b32 s49, s21
        s_and_b32 s38, s56, 3
        s_lshr_b32 s39, s56, 2
        s_lshl_b32 s39, s39, 3
        s_add_u32 s56, s38, s39
        s_lshl_b32 s58, s35, 16
        s_mov_b32 s59, 0
        L_{tag}_f2:
        s_xor_b32 s38, s59, s34
        s_and_b32 s39, s38, 1
        s_lshl_b32 s39, s39, 2
        s_lshr_b32 s38, s38, 1
        s_lshl_b32 s38, s38, 4
        s_add_u32 s38, s38, s39
        s_add_u32 s38, s38, s56
        s_lshl_b32 s38, s38, 10
        s_add_u32 m0, s38, 65536
        s_add_u32 s38, s38, s58
        buffer_load_dwordx4 v5, s[48:51], s38 offen{o['nt_w']} lds
        s_waitcnt vmcnt({o['thr_t']})
        s_add_u32 s59, s59, 1
        s_cmp_lt_u32 s59, 8
        s_cbranch_scc1 L_{tag}_f2
        L_{tag}_f3:
        ''')

    def groupB(self):
        a = self.a; o = self.o
        W = 40
        a('L_B:')
        self.srd(44, 8, 4194304)
        a(f'''
        v_lshrrev_b32 v4, 4, v1
        v_and_b32 v5, 15, v1
        v_lshlrev_b32 v2, 18, v4
        v_lshl_add_u32 v2, v5, 4, v2
        s_lshl_b32 s48, s33, 20
        s_lshl_b32 s38, s35, 8
        s_add_u32 s48, s48, s38
        s_and_b32 s49, s34, 3              ; rot
        s_barrier
        ''')
        n = 0
        for u in range(4):
            a(f's_xor_b32 s38, s49, {u}\ns_lshl_b32 s38, s38, 16\ns_add_u32 s38, s38, s48')
            for k in range(8):
                r = W + 32*u + 4*k
                a(f'buffer_load_dwordx4 v[{r}:{r+3}], v2, s[44:47], s38 offen{o["nt_w"]}')
                if k < 7: a('s_add_u32 s38, s38, 8192')
                n += 1
                if n == o['nb']: self.sig(C_WQ, 6)
        self.stamp(1)
        a(f'''
        v_and_b32 v6, 31, v1
        v_lshlrev_b32 v6, 3, v6
        v_lshrrev_b32 v5, 1, v5
        v_lshlrev_b32 v5, 4, v5
        v_lshl_add_u32 v7, v4, 9, v5
        s_lshl_b32 s38, s33, 11''')
        for u in range(4):
            a(f's_xor_b32 s{50+u}, s49, {u}\ns_lshl_b32 s{50+u}, s{50+u}, 7\ns_add_u32 s{50+u}, s{50+u}, s38')
        a(f'''
        v_and_b32 v4, 1, v1
        v_cmp_eq_u32 vcc, 1, v4
        v_mov_b32 v2, 0x0c0c0100
        v_mov_b32 v4, 0x01000c0c
        v_cndmask_b32 v2, v2, v4, vcc
        v_mov_b32 v3, 0x0c0c0302
        v_mov_b32 v4, 0x03020c0c
        v_cndmask_b32 v3, v3, v4, vcc
        L_B_fl:
        global_load_dword v4, v6, s[28:29] sc1''')
        self.budget()
        a('''s_waitcnt vmcnt(0)
        v_cmp_eq_u32 vcc, 0, v4
        s_cbranch_vccnz L_B_fl''')
        self.stamp(2)
        def hload():
            for u in range(4): a(f'buffer_load_dwordx4 v[{8+4*u}:{11+4*u}], v7, s[40:43], s{50+u} offen sc1')
        hload()
        for t in range(8): self.swaps(W + 16*t)
        a('s_branch L_B_h1\nL_B_h0:')
        hload()
        self.budget()
        a('L_B_h1:\ns_waitcnt vmcnt(0)')
        self.check(8, 16, 24)
        a('s_cbranch_vccnz L_B_h0')
        self.stamp(3)
        def perm(t, i):
            dst = (4 if t == 0 else W + 16*(t-1)) + i
            src = 8 + 2*t + (i >> 1)
            a(f'v_perm_b32 v{dst}, v{src}, v{src}, v{2+(i&1)}')
        for i in range(4): perm(0, i)
        for t in range(8):
            op = 4 if t == 0 else W + 16*(t-1)
            for p in range(4):
                r = W + 16*t + 4*p
                a(f'v_mfma_f32_16x16x32_bf16 v[{24+4*p}:{27+4*p}], v[{r}:{r+3}], v[{op}:{op+3}], ' + ('0' if t == 0 else f'v[{24+4*p}:{27+4*p}]'))
                if t < 7 and p < 2: perm(t+1, 2*p); perm(t+1, 2*p+1)
        a(f'''s_lshl_b32 s38, s33, 12
        s_add_u32 s38, s38, {S2P}
        v_lshl_add_u32 v4, v1, 4, s38''')
        for p in range(4): a(f'ds_write_b128 v4, v[{24+4*p}:{27+4*p}] offset:{p*1024}')
        self.sig(C_S2, 5)
        self.stamp(4)
        a(f'''
        v_lshlrev_b32 v2, 4, v1
        s_lshl_b32 s50, s34, 15
        s_lshl_b32 s38, s33, 13
        s_add_u32 s50, s50, s38
        s_add_u32 s50, s50, {QL}
        s_add_u32 s51, s50, 4096
        s_mul_i32 s38, s33, {8*QROW}
        s_add_u32 s38, s38, {QR}
        v_add_u32 v3, s38, v2''')
        self.wait(C_QP, 1, 5)
        self.stamp(5)
        a('L_B_q:')
        for t in range(8):
            a(f'buffer_load_dwordx4 v[{W+4*t}:{W+3+4*t}], v2, s[40:43], s{50+(t>>2)} offen offset:{(t&3)*1024} sc1')
        self.budget()
        a('s_waitcnt vmcnt(0)')
        self.check(W, 32, 5)
        a('''s_cbranch_vccnz L_B_q
        s_mov_b32 s38, -1
        s_mov_b32 s39, 0x3fffffff
        s_mov_b64 exec, s[38:39]''')
        for t in range(8): a(f'ds_write_b128 v3, v[{W+4*t}:{W+3+4*t}] offset:{t*QROW}')
        a('s_mov_b64 exec, -1')
        self.sig(C_Q, 5)
        self.stamp(6)
        self.srd(44, 12, 4194304)
        a(f'''
        v_lshrrev_b32 v4, 4, v1
        v_and_b32 v5, 15, v1
        v_lshlrev_b32 v2, 13, v4
        v_lshl_add_u32 v2, v5, 4, v2''')
        self.wait(C_ISS, 4, 6, sleep=1)
        for t in range(8):
            a(f'''s_xor_b32 s38, s34, {t}
            s_and_b32 s39, s38, 1
            s_lshl_b32 s39, s39, 19
            s_lshr_b32 s38, s38, 1
            s_lshl_b32 s38, s38, 15
            s_add_u32 s38, s38, s39
            s_add_u32 s38, s38, s48''')
            for i in range(4):
                r = W + 16*t + 4*i
                a(f's_add_u32 s39, s38, {(32*(i&1) + 16*(i>>1))*8192}')
                a(f'buffer_load_dwordx4 v[{r}:{r+3}], v2, s[44:47], s39 offen{o["nt_w"]}')
                if t or i == 3: a(f's_waitcnt vmcnt({o["thr_t"]})')
            if t: self.swaps(W + 16*(t-1))
        self.stamp(7)
        self.ffn_dma('B')
        self.swaps(W + 16*7)
        a(f'''
        v_and_b32 v2, 1, v1
        v_lshlrev_b32 v2, 9, v2
        v_lshrrev_b32 v4, 4, v1
        v_lshl_add_u32 v2, v4, 5, v2
        s_lshl_b32 s38, s33, 10
        s_add_u32 s38, s38, {CLB}
        v_add_u32 v2, s38, v2
        s_lshl_b32 s38, s33, 9
        s_add_u32 s38, s38, {CTXB}
        v_lshl_add_u32 v3, v1, 5, s38
        s_lshl_b32 s38, s33, 2
        v_add_u32 v5, s38, v0
        s_waitcnt vmcnt(0)''')
        self.sig(C_FFW, 6)
        self.stamp(8)
        self.wait(F_CL, 1, 6, addr='v5')
        self.stamp(9)
        def opr(t): return 4 + 4*t if t < 5 else W + 4*(t-5)
        def rdop(t): a(f'ds_read_b128 v[{opr(t)}:{opr(t)+3}], v2 offset:{128*(t>>1) + 16*(t&1)}')
        for t in range(5): rdop(t)
        for t in range(8):
            a(f's_waitcnt lgkmcnt({4 if t == 0 else 7-t})')
            for p in range(4):
                r = W + 16*t + 4*p
                a(f'v_mfma_f32_16x16x32_bf16 v[{24+4*p}:{27+4*p}], v[{opr(t)}:{opr(t)+3}], v[{r}:{r+3}], ' + ('0' if t == 0 else f'v[{24+4*p}:{27+4*p}]'))
            if t == 0:
                for u in range(5, 8): rdop(u)
        a(f'''s_mov_b64 exec, 0xffff
        ds_write2_b64 v3, v[24:25], v[28:29] offset0:0 offset1:1
        ds_write2_b64 v3, v[32:33], v[36:37] offset0:2 offset1:3
        s_mov_b64 exec, -1''')
        self.sig(C_CTX, 6)
        self.stamp(10)
        a('s_branch L_end')

    def groupC(self):
        a = self.a; o = self.o
        W = 40
        a('L_C:')
        a('s_cmp_lt_u32 s2, 32\ns_cbranch_scc1 L_C_s1\ns_barrier\ns_branch L_C_s1d\nL_C_s1:')
        self.srd(44, 22, 8192)
        self.silu_load(8, 2, 44)
        self.srd(44, 4, 8192)
        self.srd(48, 24, 3145728)
        for i in range(16): a(f'v_mov_b32 v{24+i}, 0x3f803f80')
        a(f'''
        v_and_b32 v2, 15, v1
        v_lshlrev_b32 v2, 10, v2
        v_lshrrev_b32 v3, 4, v1
        v_lshl_add_u32 v4, v3, 4, v2
        v_lshl_add_u32 v5, v3, 3, v2
        s_lshl_b32 s39, s55, 5
        s_mov_b32 s56, 0x00ff00ff
        s_mov_b32 s57, 0x00ff00ff
        s_mov_b64 exec, s[56:57]''')
        for s in range(4): a(f'buffer_load_dwordx4 v[{24+4*s}:{27+4*s}], v4, s[44:47], s38 offen offset:{64*s}')
        a(f'''buffer_load_dwordx2 v[6:7], v5, s[44:47], s39 offen
        s_mov_b64 exec, -1
        v_lshrrev_b32 v2, 2, v1
        v_mul_u32_u24 v4, 6144, v2
        v_lshrrev_b32 v2, 5, v1
        v_bfe_u32 v5, v1, 1, 1
        v_xor_b32 v2, v2, v5
        v_lshl_add_u32 v4, v2, 10, v4
        v_and_b32 v2, 1, v1
        v_lshl_add_u32 v4, v2, 4, v4
        s_mul_i32 s58, s33, {128*6144}
        s_add_u32 s58, s58, s39
        s_lshl_b32 s59, s33, 13
        s_add_u32 s59, s59, {S1W}
        s_lshl_b32 s60, s37, 1''')
        for i in range(8):
            a(f'''s_xor_b32 s38, s60, {i}
            s_lshl_b32 s39, s38, 10
            s_add_u32 m0, s39, s59
            s_mul_i32 s38, s38, {16*6144}
            s_add_u32 s38, s38, s58
            buffer_load_dwordx4 v4, s[48:51], s38 offen{o['nt_w']} lds''')
        a(f'''s_barrier
        v_bfe_u32 v2, v1, 2, 2
        v_lshl_add_u32 v2, v3, 3, v2
        v_lshlrev_b32 v2, 6, v2
        v_and_b32 v4, 1, v3
        v_lshl_add_u32 v2, v4, 5, v2
        v_and_b32 v4, 3, v1
        v_lshl_add_u32 v2, v4, 3, v2
        v_add_u32 v2, s59, v2
        v_xor_b32 v3, 32, v2
        s_waitcnt vmcnt(13)''')
        self.stamp(1)
        self.silu_calc(8, 40)
        a('s_waitcnt vmcnt(8)')
        for s in range(4):
            a(f'v_mfma_f32_16x16x32_bf16 v[88:91], v[{24+4*s}:{27+4*s}], v[{24+4*s}:{27+4*s}], ' + ('0' if s == 0 else 'v[88:91]'))
        a(f'''s_mul_i32 s38, s33, 3072
        s_add_u32 s38, s38, {S1P}
        v_lshl_add_u32 v4, v1, 4, s38
        s_waitcnt vmcnt(0)''')
        self.stamp(2)
        for s in range(4):
            for u in range(2):
                B = 48 + 8*s + 4*u
                a(f'ds_read_b64_tr_b16 v[{B}:{B+1}], v{2+u} offset:{s*2048}')
                a(f'ds_read_b64_tr_b16 v[{B+2}:{B+3}], v{2+u} offset:{s*2048+256}')
            if s == 2: a('s_waitcnt lgkmcnt(8)')
        for s in range(4):
            a(f's_waitcnt lgkmcnt({12-4*s})')
            for u in range(2):
                B = 48 + 8*s + 4*u
                a(f'v_mfma_f32_16x16x32_bf16 v[{80+4*u}:{83+4*u}], v[{B}:{B+3}], v[{8+4*s}:{11+4*s}], ' + ('0' if s == 0 else f'v[{80+4*u}:{83+4*u}]'))
        a('ds_write_b128 v4, v[88:91] offset:2048')
        for u in range(2): a(f'ds_write_b128 v4, v[{80+4*u}:{83+4*u}] offset:{u*1024}')
        self.sig(C_S1, 5)
        a(f'''s_cmp_lg_u32 s33, 0
        s_cbranch_scc1 L_C_s1d
        v_and_b32 v2, 7, v1
        v_lshrrev_b32 v3, 2, v2
        v_lshl_add_u32 v3, v3, 4, v2
        v_lshlrev_b32 v3, 4, v3
        v_and_b32 v5, 3, v1
        v_lshl_add_u32 v3, v5, 2, v3
        v_add_u32 v3, {S1P + 2048}, v3     ; sumsq
        v_lshlrev_b32 v2, 4, v2
        v_add_u32 v8, {S1P + 2048 + 512}, v2
        v_lshrrev_b32 v9, 5, v1
        v_lshl_add_u32 v2, v9, 7, v2
        v_bfe_u32 v9, v1, 4, 1
        v_lshl_add_u32 v2, v9, 3, v2
        v_lshlrev_b32 v12, 16, v6
        v_and_b32 v13, 0xffff0000, v6
        v_lshlrev_b32 v14, 16, v7
        v_and_b32 v15, 0xffff0000, v7
        s_lshl_b32 s39, s55, 8''')
        self.wait(C_S1, 4, 5)
        for w in range(4):
            a(f'ds_read_b32 v{16+w}, v8 offset:{w*3072}\nds_read_b32 v{20+w}, v3 offset:{w*3072}')
        for w in range(1, 4):
            for u in range(2): a(f'ds_read_b128 v[{40+8*w+4*u}:{43+8*w+4*u}], v4 offset:{w*3072+u*1024}')
        a(f'''s_mov_b32 s38, {f32(1/512)}
        s_waitcnt lgkmcnt(6)
        v_add_f32 v16, v16, v17
        v_add_f32 v20, v20, v21
        v_add_f32 v18, v18, v19
        v_add_f32 v22, v22, v23
        v_add_f32 v16, v16, v18
        v_add_f32 v20, v20, v22
        v_mul_f32 v16, s38, v16
        v_mul_f32 v20, s38, v20
        v_fma_f32 v20, -v16, v16, v20
        v_max_f32 v20, 0, v20
        v_add_f32 v20, {f32(1e-5)}, v20
        v_rsq_f32 v20, v20''')
        for i in range(4): a(f'v_sub_f32 v{12+i}, v{12+i}, v16')
        for i in range(4): a(f'v_mul_f32 v{12+i}, v{12+i}, v20')
        a('s_waitcnt lgkmcnt(0)')
        for r in range(8): a(f'v_add_f32 v{80+r}, v{80+r}, v{48+r}\nv_add_f32 v{56+r}, v{56+r}, v{64+r}')
        for r in range(8): a(f'v_add_f32 v{80+r}, v{80+r}, v{56+r}')
        for i in range(4): a(f'v_add_f32 v{80+i}, v{80+i}, v{12+i}')
        for i in range(4): a(f'v_fmac_f32 v{80+i}, v{84+i}, v{12+i}')
        a(f'''v_cvt_pk_bf16_f32 v80, v80, v81
        v_cvt_pk_bf16_f32 v81, v82, v83
        s_mov_b64 exec, s[56:57]
        buffer_store_dwordx2 v[80:81], v2, s[40:43], s39 offen sc1
        s_mov_b64 exec, -1''')
        self.stamp(3)
        a('L_C_s1d:')
        a('s_cmp_eq_u32 s33, 1\ns_cbranch_scc1 L_C_s3')
        self.sig(C_LATE, 5)
        a('s_branch L_C_t\nL_C_s3:')
        self.srd(44, 10, 4194304)
        a(f'''
        v_lshrrev_b32 v3, 4, v1
        v_and_b32 v2, 15, v1
        v_xor_b32 v4, v2, v3
        v_lshlrev_b32 v4, 4, v4
        v_lshl_add_u32 v4, v3, 13, v4
        v_xor_b32 v5, 64, v4
        v_xor_b32 v6, 0x80, v4
        v_xor_b32 v7, 0xc0, v4
        s_lshl_b32 s48, s34, 19
        s_lshl_b32 s38, s35, 8
        s_add_u32 s48, s48, s38''')
        for i in range(16):
            T = i >> 2
            a(f'''s_mov_b32 m0, {WUK + i*1024}
            s_add_u32 s38, s48, {(16*(i&3) + 8*(T>>1) + 4*(T&1))*8192}
            buffer_load_dwordx4 v{4+(i&3)}, s[44:47], s38 offen{o['nt_w']} lds''')
        a(f'''
        v_mov_b32 v8, -1
        v_mov_b32 v9, -1
        v_mov_b32 v10, -1
        v_mov_b32 v11, -1
        v_lshlrev_b32 v12, 4, v1
        s_add_u32 s38, s54, {STAT}
        buffer_store_dwordx4 v[8:11], v12, s[40:43], s38 offen sc1
        s_add_u32 s38, s54, {OUTP}
        buffer_store_dwordx4 v[8:11], v12, s[40:43], s38 offen sc1
        s_add_u32 s38, s54, {YP}
        buffer_store_dwordx4 v[8:11], v12, s[40:43], s38 offen sc1
        s_cmp_lt_u32 s35, 28
        s_cbranch_scc1 L_C_nm
        v_lshrrev_b32 v13, 3, v1
        v_lshlrev_b32 v13, 10, v13
        v_and_b32 v14, 7, v1
        v_lshl_add_u32 v13, v14, 4, v13
        s_sub_u32 s38, s35, 28
        s_lshl_b32 s38, s38, 13
        s_lshl_b32 s39, s34, 7
        s_add_u32 s38, s38, s39
        s_add_u32 s38, s38, {MOD}
        buffer_store_dwordx4 v[8:11], v13, s[40:43], s38 offen sc1
        L_C_nm:
        v_lshlrev_b32 v4, 2, v3
        v_xor_b32 v4, v4, v2
        v_lshlrev_b32 v4, 4, v4
        v_lshl_add_u32 v4, v2, 8, v4
        v_add_u32 v4, {WUK}, v4
        v_xor_b32 v5, 16, v4
        v_xor_b32 v6, 32, v4
        v_xor_b32 v7, 48, v4
        v_add_u32 v12, {S2P}, v12
        v_and_b32 v13, 1, v1
        v_lshlrev_b32 v14, 4, v13
        v_lshl_add_u32 v15, v3, 5, v14
        v_lshrrev_b32 v2, 1, v2
        v_lshl_add_u32 v15, v2, 15, v15
        s_mov_b32 s38, 0xffff
        v_lshlrev_b32 v14, v14, s38
        v_cmp_eq_u32 s[56:57], 1, v13
        s_lshl_b32 s49, s35, 10
        s_lshl_b32 s38, s34, 7
        s_add_u32 s49, s49, s38
        s_add_u32 s49, s49, {QL}
        s_mov_b32 s50, {f32(SC)}
        s_waitcnt vmcnt(0)''')
        for T in range(4):
            for j in range(4): a(f'ds_read_b128 v[{104+16*T+4*j}:{107+16*T+4*j}], v{4+j} offset:{T*4096}')
            a('s_waitcnt lgkmcnt(0)')
        self.sig(C_LATE, 5)
        self.stamp(4)
        self.wait(C_S2, 4, 5)
        self.stamp(5)
        for p in range(4):
            for w in range(4): a(f'ds_read_b128 v[{40+16*p+4*w}:{43+16*p+4*w}], v12 offset:{(w*4+p)*1024}')
            if p == 2: a('s_waitcnt lgkmcnt(8)')
        for p in range(4):
            a(f's_waitcnt lgkmcnt({12-4*p})')
            r = 40 + 16*p
            for j in range(4): a(f'v_add_f32 v{r+j}, v{r+j}, v{r+4+j}\nv_add_f32 v{r+8+j}, v{r+8+j}, v{r+12+j}')
            for j in range(4): a(f'v_add_f32 v{r+j}, v{r+j}, v{r+8+j}')
            for j in range(4): a(f'v_cvt_pk_bf16_f32 v{r+j}, v{r+j}, v{r+j}')
            for j in range(4): a(f'v_and_b32 v{16+4*j+p}, v{r+j}, v14')
        for j in range(4):
            for T in range(4):
                r = 104 + 16*T + 4*j
                a(f'v_mfma_f32_16x16x32_bf16 v[{40+4*T}:{43+4*T}], v[{r}:{r+3}], v[{16+4*j}:{19+4*j}], ' + ('0' if j == 0 else f'v[{40+4*T}:{43+4*T}]'))
        for r in range(16): a(f'v_add_f32_dpp v{40+r}, v{40+r}, v{40+r} quad_perm:[1,0,3,2] {DPPF}')
        for r in range(8): a(f'v_cndmask_b32 v{40+r}, v{40+r}, v{48+r}, s[56:57]')
        for r in range(8): a(f'v_mul_f32 v{40+r}, s50, v{40+r}')
        for r in range(4): a(f'v_cvt_pk_bf16_f32 v{40+r}, v{40+2*r}, v{41+2*r}')
        a('buffer_store_dwordx4 v[40:43], v15, s[40:43], s49 offen sc1')
        self.stamp(6)
        a('s_waitcnt vmcnt(0)')
        self.sig(C_QP, 5)
        a('L_C_t:')
        self.srd(44, 14, 4194304)
        a(f'''
        v_lshrrev_b32 v4, 4, v1
        v_and_b32 v5, 15, v1
        v_lshlrev_b32 v2, 15, v4
        v_lshl_add_u32 v2, v5, 4, v2
        s_lshl_b32 s48, s35, 17
        s_lshl_b32 s38, s33, 8
        s_add_u32 s48, s48, s38''')
        self.wait(C_ISS, 4, 6, sleep=1)
        for t in range(8):
            a(f's_xor_b32 s38, s34, {t}\ns_lshl_b32 s38, s38, 12\ns_add_u32 s38, s38, s48')
            for i in range(4):
                r = W + 16*t + 4*i
                a(f'buffer_load_dwordx4 v[{r}:{r+3}], v2, s[44:47], s38 offen offset:{1024*i}{o["nt_w"]}')
                if t or i == 3: a(f's_waitcnt vmcnt({o["thr_t"]})')
            if t: self.swaps(W + 16*(t-1))
        self.stamp(7)
        self.ffn_dma('C')
        self.swaps(W + 16*7)
        a(f'''
        v_and_b32 v2, 7, v1
        v_xor_b32 v2, s34, v2
        v_lshlrev_b32 v2, 4, v2
        v_lshrrev_b32 v4, 4, v1
        v_lshl_add_u32 v2, v4, 7, v2
        v_bfe_u32 v4, v1, 3, 1
        v_lshl_add_u32 v2, v4, 10, v2
        v_add_u32 v2, {CTXB}, v2
        v_and_b32 v3, 1, v1
        v_lshlrev_b32 v3, 4, v3
        s_mov_b32 s38, 0xffff
        v_lshlrev_b32 v3, v3, s38
        v_lshlrev_b32 v4, 4, v1
        s_lshl_b32 s38, s33, 8
        s_add_u32 s48, s54, s38
        s_add_u32 s48, s48, {OUTP}
        s_waitcnt vmcnt(0)''')
        self.sig(C_FFW, 6)
        self.stamp(8)
        self.wait(C_CTX, 4, 6)
        self.stamp(9)
        a('ds_read_b128 v[8:11], v2\nds_read_b128 v[12:15], v2 offset:512\ns_waitcnt lgkmcnt(0)')
        for i in range(4): a(f'v_add_f32 v{8+i}, v{8+i}, v{12+i}')
        for i in range(4): a(f'v_add_f32_dpp v{8+i}, v{8+i}, v{8+i} row_ror:8 {DPPF}')
        for i in range(4): a(f'v_cvt_pk_bf16_f32 v{8+i}, v{8+i}, v{8+i}')
        def bc(t, i): a(f'v_and_b32_dpp v{16+4*(t&1)+i}, v{8+i}, v3 row_newbcast:{t} {DPPF}')
        for i in range(4): bc(0, i)
        for t in range(8):
            op = 16 + 4*(t & 1)
            for p in range(4):
                r = W + 16*t + 4*p
                a(f'v_mfma_f32_16x16x32_bf16 v[{24+4*p}:{27+4*p}], v[{op}:{op+3}], v[{r}:{r+3}], ' + ('0' if t == 0 else f'v[{24+4*p}:{27+4*p}]'))
                if t < 7 and p < 2: bc(t+1, 2*p); bc(t+1, 2*p+1)
        for p in range(4): a(f'v_cvt_pk_bf16_f32 v{8+p}, v{24+4*p}, v{25+4*p}')
        a('''s_mov_b64 exec, 0xffff
        buffer_store_dwordx4 v[8:11], v4, s[40:43], s48 offen sc1
        s_mov_b64 exec, -1''')
        self.stamp(10)
        a('s_waitcnt vmcnt(0)')
        self.sig(C_OUT, 6)

    def epilogue(self):
        a = self.a
        a('L_end:')
        if self.dbg:
            self.stamp(15)
            a('s_waitcnt lgkmcnt(0)\ns_mov_b64 exec, -1')
            for k in range(16): a(f'v_mov_b32 v{8+k}, s{64+2*k}')
            a(f'''v_mov_b32 v22, s3
            s_mul_i32 s38, s2, 12
            s_add_u32 s38, s38, s32
            s_lshl_b32 s38, s38, 6
            s_add_u32 s38, s38, {STMP}
            v_mov_b32 v2, 0
            s_mov_b64 exec, 1''')
            for k in range(4): a(f'buffer_store_dwordx4 v[{8+4*k}:{11+4*k}], v2, s[40:43], s38 offen offset:{16*k}')
        a('L_exit:\ns_endpgm\nL_codeend:')

    def build(self):
        a = self.a; K = NAME + '_kernel'
        kstart(a, K)
        n0 = len(a.L)
        if self.dbg:
            for k in range(1, 16): a(f's_mov_b32 s{64+2*k}, 0')
        self.prologue(); self.groupA(); self.groupB(); self.groupC(); self.epilogue()
        body, nn = hazard.fix(a.L[n0:])
        a.L[n0:] = body
        kdesc(a, K, 168, 168)
        h = Asm()
        header(h, [(None, 256, 768, 163840)])
        return h.text() + a.text(), nn

if __name__ == '__main__':
    out = sys.argv[1]
    dbg = 'dbg' in sys.argv[2:]
    opt = {}
    for x in sys.argv[2:]:
        if '=' in x:
            k, v = x.split('=')
            opt[k] = int(v) if v.lstrip('-').isdigit() else (' ' + v if v else '')
    t, nn = G(dbg, opt).build()
    open(out, 'w').write(t)
    print('written', out, 'nops inserted', nn)
```

```python
import sys, math
from asmlib import *
import hazard

HBUF = 0x0
MOD  = 0x2000
QL   = 0x10000
STAT = 0x50000
OUTP = 0x90000
YP   = 0xD0000
PART = 0x200000
STMP = 0xA00000
WSSZ = 0x1000000
KV   = 0
QR   = 131072
QROW = 1008
S1W  = KV + 98304
WUK  = KV + 81920
SYNC = QR + QROW*24 + 992
def pad(i, w): return QROW*i + 4*w
MAXO = QR + 32256 - SYNC
C_S1, C_S2, C_LATE, C_WQ = pad(0,0), pad(0,1), pad(0,2), pad(0,3)
C_Q, C_ISS, C_P, C_PV = pad(1,0), pad(1,1), pad(1,2), pad(1,3)
F_CL = pad(2,0)
C_CTX, C_OUT, C_FFW, C_QP = pad(3,0), pad(3,1), pad(3,2), pad(3,3)
C_U = pad(4,0)
LN1, LN2 = pad(5,0), pad(6,0)
S1P = QR; S2P = QR
PB = QR; LB = QR + 8192; COEF = QR + 8704; CLB = QR + 9728; CTXB = QR + 13824; H2B = QR + 15872; UB = QR + 16896
MOP = KV + 65536
SC = 128**-0.5 * math.log2(math.e)
import struct
def f32(x): return '0x%08x' % struct.unpack('<I', struct.pack('<f', x))[0]
DPPF = 'row_mask:0xf bank_mask:0xf'

class G:
    def __init__(self, dbg=False, opt=None):
        self.a = Asm(); self.dbg = dbg; self.n = 0
        self.o = dict(nb=32, thr=3, nt_w='', nt_kv=' nt', thr_t=3, pf=True)
        if opt: self.o.update(opt)
    def lab(self, p):
        self.n += 1; return f'L_{p}{self.n}'
    def stamp(self, k):
        if self.dbg or 'leak' in self.o: self.a(f's_memrealtime s[{64+2*k}:{65+2*k}]')
    def sig(self, off, tmp):
        self.a(f'''v_mov_b32 v{tmp}, 1
        s_mov_b64 exec, 1
        ds_add_u32 v0, v{tmp} offset:{off}
        s_mov_b64 exec, -1''')
    def wait(self, off, target, tmp, sleep=0, addr='v0'):
        L = self.lab('w')
        self.a(f'{L}:')
        if sleep: self.a(f's_sleep {sleep}')
        self.a(f'''ds_read_b32 v{tmp}, {addr} offset:{off}
        s_sub_u32 s3, s3, 1
        s_cbranch_scc1 L_end
        s_waitcnt lgkmcnt(0)
        v_cmp_gt_u32 vcc, {target}, v{tmp}
        s_cbranch_vccnz {L}''')
    def srd(self, s, p, size):
        self.a(f'''s_mov_b32 s{s}, s{p}
        s_mov_b32 s{s+1}, s{p+1}
        s_mov_b32 s{s+2}, {size}
        s_mov_b32 s{s+3}, 0x20000''')
    def check(self, r0, n, tmp):
        a = self.a
        a(f'v_max3_u32 v{tmp}, v{r0}, v{r0+1}, v{r0+2}') if n >= 3 else a(f'v_max_u32 v{tmp}, v{r0}, v{r0+n-1}')
        i = 3
        while i < n:
            if i + 1 < n: a(f'v_max3_u32 v{tmp}, v{tmp}, v{r0+i}, v{r0+i+1}'); i += 2
            else: a(f'v_max_u32 v{tmp}, v{tmp}, v{r0+i}'); i += 1
        a(f'v_cmp_eq_u32 vcc, -1, v{tmp}')
    def budget(self):
        self.a('s_sub_u32 s3, s3, 1\ns_cbranch_scc1 L_end')
    def swaps(self, base):
        for i in range(4):
            for p in range(i+1, 4):
                self.a(f'v_swap_b32 v{base+4*i+p}, v{base+4*p+i}')
    def red32(self, op, r, t):
        a = self.a
        for m in ('quad_perm:[1,0,3,2]', 'quad_perm:[2,3,0,1]', 'row_half_mirror', 'row_mirror'):
            a(f'{op}_dpp v{r}, v{r}, v{r} {m} {DPPF}')
        a(f'v_mov_b32 v{t}, v{r}')
        a(f'v_permlane16_swap_b32 v{r}, v{t}')
        a(f'{op} v{r}, v{r}, v{t}')
    def slotmasks(self, m, lane, t):
        a = self.a
        a(f'''v_and_b32 v{t}, 1, v{lane}
        v_lshlrev_b32 v{t}, 4, v{t}
        s_mov_b32 s38, 0xffff
        v_lshlrev_b32 v{t}, v{t}, s38
        v_bfe_u32 v{t+1}, v{lane}, 1, 2''')
        for i in range(4):
            a(f'v_cmp_eq_u32 vcc, {i}, v{t+1}')
            a(f'v_cndmask_b32 v{m+i}, 0, v{t}, vcc')
    def silu_load(self, raw, t, srd):
        a = self.a
        a(f'''v_and_b32 v{t}, 7, v1
        v_lshlrev_b32 v{t}, 10, v{t}
        v_bfe_u32 v{t+1}, v1, 3, 1
        v_lshl_add_u32 v{t}, v{t+1}, 7, v{t}
        v_lshrrev_b32 v{t+1}, 4, v1
        v_lshl_add_u32 v{t}, v{t+1}, 4, v{t}
        s_lshl_b32 s38, s33, 8
        buffer_load_dwordx4 v[{raw}:{raw+3}], v{t}, s[{srd}:{srd+3}], s38 offen
        buffer_load_dwordx4 v[{raw+4}:{raw+7}], v{t}, s[{srd}:{srd+3}], s38 offen offset:64''')
    def silu_calc(self, raw, t):
        a = self.a
        a(f's_mov_b32 s38, {f32(-math.log2(math.e))}')
        for i in range(8):
            a(f'''v_lshlrev_b32 v{t}, 16, v{raw+i}
            v_and_b32 v{t+1}, 0xffff0000, v{raw+i}
            v_mul_f32 v{t+2}, s38, v{t}
            v_mul_f32 v{t+3}, s38, v{t+1}
            v_exp_f32 v{t+2}, v{t+2}
            v_exp_f32 v{t+3}, v{t+3}
            v_add_f32 v{t+2}, 1.0, v{t+2}
            v_add_f32 v{t+3}, 1.0, v{t+3}
            v_rcp_f32 v{t+2}, v{t+2}
            v_rcp_f32 v{t+3}, v{t+3}
            v_mul_f32 v{t}, v{t}, v{t+2}
            v_mul_f32 v{t+1}, v{t+1}, v{t+3}
            v_cvt_pk_bf16_f32 v{raw+i}, v{t}, v{t+1}''')
        for i in range(8):
            a(f'v_mov_b32_dpp v{raw+8+i}, v{raw+i} row_ror:8 {DPPF}')

    def prologue(self):
        a = self.a
        self.stamp(0)
        a(f'''
        s_cmp_ge_u32 s2, 256
        s_cbranch_scc1 L_exit
        s_load_dwordx16 s[4:19], s[0:1], 0
        s_load_dwordx8 s[20:27], s[0:1], 64
        s_load_dwordx4 s[28:31], s[0:1], 96
        v_lshrrev_b32 v2, 6, v0
        v_and_b32 v1, 63, v0
        v_readfirstlane_b32 s32, v2
        s_and_b32 s36, s2, 7
        s_lshr_b32 s37, s2, 3
        s_and_b32 s34, s37, 7
        s_lshr_b32 s35, s37, 3
        s_lshl_b32 s35, s35, 3
        s_add_u32 s35, s35, s36
        s_and_b32 s33, s32, 3
        s_mov_b32 s3, 0x400000
        v_mov_b32 v0, {SYNC}
        ''')
        if self.o['pf']:
            a(f'''
            s_getpc_b64 s[52:53]
            L_pc:
            s_mul_i32 s38, s37, 12
            s_add_u32 s38, s38, s32
            s_lshl_b32 s38, s38, 7
            s_cmp_ge_u32 s38, L_codeend-L_pc
            s_cbranch_scc1 L_nopf
            v_mov_b32 v2, s38
            s_mov_b64 exec, 1
            global_load_dword v167, v2, s[52:53]
            s_mov_b64 exec, -1
            L_nopf:
            ''')
        a(f'''
        s_lshl_b32 s54, s34, 5
        s_add_u32 s54, s54, s35
        s_lshl_b32 s54, s54, 10      ; (b*32+j)*1024
        s_lshl_b32 s55, s36, 2
        s_add_u32 s55, s55, s37
        s_waitcnt lgkmcnt(0)
        ''')
        self.srd(40, 30, WSSZ)
        a('''
        s_cmp_ge_u32 s32, 8
        s_cbranch_scc1 L_C
        s_cmp_ge_u32 s32, 4
        s_cbranch_scc1 L_B
        ''')

    def groupA(self):
        a = self.a; o = self.o
        a('L_A:')
        a(f'''
        v_mov_b32 v8, -1
        v_mov_b32 v9, -1
        v_mov_b32 v10, -1
        v_mov_b32 v11, -1
        v_lshlrev_b32 v2, 4, v1
        s_cmp_lg_u32 s33, 0
        s_cbranch_scc1 L_A_i1
        v_cmp_lt_u32 vcc, 4, v1
        v_mul_u32_u24 v3, {QROW}, v1
        v_cndmask_b32 v4, 0, v8, vcc
        v_add_u32 v3, v3, v0
        v_mov_b32 v5, v4
        v_mov_b32 v6, v4
        v_mov_b32 v7, v4
        v_add_u32 v12, v2, v0
        s_mov_b64 exec, 0xff
        ds_write_b128 v3, v[4:7]
        s_mov_b32 exec_lo, -1
        ds_write_b128 v12, v[8:11] offset:{MAXO}
        s_mov_b64 exec, -1
        L_A_i1:
        s_cmp_lg_u32 s33, 1
        s_cbranch_scc1 L_A_i2
        s_cmp_ge_u32 s2, 32
        s_cbranch_scc1 L_A_i2
        s_lshl_b32 s38, s55, 13
        s_add_u32 s38, s38, {QL}
        s_add_u32 s39, s38, 4096
        ''')
        for i in range(4): a(f'buffer_store_dwordx4 v[8:11], v2, s[40:43], s38 offen offset:{1024*i} sc1')
        for i in range(4): a(f'buffer_store_dwordx4 v[8:11], v2, s[40:43], s39 offen offset:{1024*i} sc1')
        a(f'''
        s_lshl_b32 s38, s55, 8
        s_mov_b64 exec, 0xffff
        buffer_store_dwordx4 v[8:11], v2, s[40:43], s38 offen sc1
        s_lshl_b32 s38, s55, 3
        v_mov_b32 v3, s38
        s_mov_b64 exec, 1
        s_waitcnt vmcnt(0)
        global_store_dword v3, v8, s[28:29] sc1
        s_mov_b64 exec, -1
        L_A_i2:
        ''')
        self.srd(44, 6, 33554432)
        a(f'''
        v_lshrrev_b32 v4, 3, v1            ; rho
        v_bfe_u32 v5, v4, 1, 1
        v_lshlrev_b32 v5, 2, v5
        v_bfe_u32 v6, v4, 2, 1
        v_or_b32 v5, v5, v6
        v_and_b32 v6, 7, v1
        v_xor_b32 v5, v5, v6
        v_lshlrev_b32 v5, 4, v5
        v_lshl_add_u32 v2, v4, 10, v5      ; voffE
        v_xor_b32 v3, 32, v2               ; voffO
        s_lshl_b32 s48, s54, 7             ; (b*4096+j*128)*1024
        s_lshl_b32 s38, s33, 15
        s_add_u32 s48, s48, s38
        s_lshl_b32 s49, s33, 12
        s_waitcnt lgkmcnt(0)
        s_barrier
        ''')
        self.wait(C_WQ, 4, 8, sleep=1)
        self.stamp(1)
        a(f'''
        s_mov_b32 s50, 0
        L_A_dma:
        s_cmp_lg_u32 s50, 5
        s_cbranch_scc1 L_A_dma1
        ''')
        self.wait(C_LATE, 4, 8)
        a('L_A_dma1:')
        for kb in range(4):
            a(f'''s_add_u32 m0, s49, {kb*1024}
            s_add_u32 s38, s48, {kb*8192}
            buffer_load_dwordx4 v{2+(kb&1)}, s[44:47], s38 offen{o['nt_kv']} lds
            s_waitcnt vmcnt({o['thr']})''')
        a(f'''
        s_add_u32 s49, s49, 16384
        s_add_u32 s48, s48, 128
        s_add_u32 s50, s50, 1
        s_cmp_lt_u32 s50, 8
        s_cbranch_scc1 L_A_dma
        ''')
        self.sig(C_ISS, 8)
        self.stamp(2)
        a(f'''
        v_and_b32 v9, 31, v1
        v_lshrrev_b32 v10, 5, v1           ; h
        v_bfe_u32 v4, v9, 1, 1
        v_lshlrev_b32 v4, 2, v4
        v_bfe_u32 v5, v9, 2, 2
        v_or_b32 v4, v4, v5                ; f
        v_xor_b32 v4, v4, v10
        v_lshlrev_b32 v4, 4, v4
        v_lshl_add_u32 v4, v9, 7, v4
        s_lshl_b32 s38, s33, 12
        v_add_u32 v4, s38, v4
        v_xor_b32 v5, 32, v4
        v_xor_b32 v6, 64, v4
        v_xor_b32 v7, 0x60, v4
        v_mul_u32_u24 v8, {QROW}, v9
        v_lshl_add_u32 v8, v10, 4, v8
        v_add_u32 v8, {QR}, v8
        v_lshlrev_b32 v11, 10, v9
        v_lshl_add_u32 v11, v10, 4, v11
        s_lshl_b32 s38, s34, 15
        s_add_u32 s38, s38, {QL}
        ''')
        self.wait(C_Q, 4, 16)
        self.stamp(3)
        a('buffer_load_dwordx4 v[12:15], v11, s[40:43], s38 offen offset:992 sc1')
        D = 4
        def rd(t):
            cb = t >> 2
            if t == 16:
                for u in range(4): a(f'v_add_u32 v{4+u}, 0x10000, v{4+u}')
            if t == 28: a('s_waitcnt vmcnt(0)')
            a(f'ds_read_b128 v[{32+4*(t%D)}:{35+4*(t%D)}], v{4+(t&3)} offset:{(cb&3)*16384}')
            if t < 31: a(f'ds_read_b128 v[{48+4*(t%D)}:{51+4*(t%D)}], v8 offset:{32*t}')
        for t in range(D-1): rd(t)
        for t in range(32):
            if t + D - 1 < 32: rd(t + D - 1)
            out = sum((2 if u < 31 else 1) for u in range(t+1, min(t+D, 32)))
            a(f's_waitcnt lgkmcnt({out})')
            q = f'v[{48+4*(t%D)}:{51+4*(t%D)}]' if t < 31 else 'v[12:15]'
            a(f'v_mfma_f32_32x32x16_bf16 v[16:31], v[{32+4*(t%D)}:{35+4*(t%D)}], {q}, ' + ('0' if t == 0 else 'v[16:31]'))
        a(f'''
        v_bfe_u32 v32, v1, 2, 2            ; r'
        v_lshl_add_u32 v33, v10, 2, v32    ; rho = 4h + r'
        v_lshrrev_b32 v32, 1, v32
        v_lshl_or_b32 v32, v32, 2, v10     ; f (nu=0)
        v_bfe_u32 v34, v1, 4, 1
        v_bfe_u32 v35, v1, 1, 1
        v_lshl_or_b32 v34, v34, 1, v35
        v_xor_b32 v32, v32, v34
        v_lshlrev_b32 v32, 4, v32
        v_lshl_add_u32 v32, v33, 7, v32
        v_and_b32 v33, 1, v1
        v_lshl_add_u32 v32, v33, 3, v32
        s_mul_i32 s38, s33, {32768+4096}
        v_add_u32 v4, s38, v32
        v_xor_b32 v5, {1024+32}, v4
        v_xor_b32 v6, 64, v4
        v_xor_b32 v7, {1024+32+64}, v4
        v_lshl_add_u32 v11, v9, 4, v0
        s_lshl_b32 s38, s33, 2
        v_add_u32 v12, s38, v11
        ''')
        self.stamp(4)
        a('v_max3_f32 v13, v16, v17, v18')
        for r in range(19, 31, 2): a(f'v_max3_f32 v13, v13, v{r}, v{r+1}')
        a(f'''v_max_f32 v13, v13, v31
        v_mov_b32 v14, v13
        v_permlane32_swap_b32 v13, v14
        v_max_f32 v13, v13, v14
        ds_write_b32 v12, v13 offset:{MAXO}
        L_A_mx:
        ds_read_b128 v[32:35], v11 offset:{MAXO}''')
        self.budget()
        a('s_waitcnt lgkmcnt(0)')
        self.check(32, 4, 36)
        a(f'''s_cbranch_vccnz L_A_mx
        v_max3_f32 v13, v32, v33, v34
        v_max_f32 v13, v13, v35''')
        def rv(i):
            kt, u, ct = i >> 3, (i >> 2) & 1, i & 3
            if i and i % 8 == 0:
                x = (kt ^ (kt-1)) * 4096
                for r in range(4): a(f'v_xor_b32 v{4+r}, {x}, v{4+r}')
            B = 32 + 4*(i % 8)
            off = (ct >> 1)*16384 + u*2048
            a(f'ds_read_b64_tr_b16 v[{B}:{B+1}], v{4+2*(ct&1)} offset:{off}')
            a(f'ds_read_b64_tr_b16 v[{B+2}:{B+3}], v{5+2*(ct&1)} offset:{off}')
        DV = 5
        for i in range(DV-1): rv(i)
        for r in range(16): a(f'v_sub_f32 v{16+r}, v{16+r}, v13')
        for r in range(16): a(f'v_exp_f32 v{16+r}, v{16+r}')
        for r in range(8): a(f'v_cvt_pk_bf16_f32 v{128+r}, v{16+2*r}, v{17+2*r}')
        a(f'''v_lshlrev_b32 v8, 4, v1
        s_lshl_b32 s38, s33, 11
        s_add_u32 s38, s38, {PB}
        v_add_u32 v8, s38, v8
        ds_write_b128 v8, v[128:131]
        ds_write_b128 v8, v[132:135] offset:1024''')
        for k in (8, 4, 2, 1):
            for r in range(k): a(f'v_add_f32 v{16+r}, v{16+r}, v{16+k+r}')
        a(f'''v_mov_b32 v14, v16
        v_permlane32_swap_b32 v16, v14
        v_add_f32 v16, v16, v14
        v_add_u32 v12, {LB - SYNC}, v12
        ds_write_b32 v12, v16''')
        self.sig(C_P, 14)
        self.stamp(5)
        for i in range(32):
            kt, u, ct = i >> 3, (i >> 2) & 1, i & 3
            if i == 4:
                self.wait(C_P, 4, 14)
                for k in range(1, 4):
                    a(f'v_xor_b32 v15, {k*2048}, v8')
                    a(f'ds_read_b128 v[{128+8*k}:{131+8*k}], v15')
                    a(f'ds_read_b128 v[{132+8*k}:{135+8*k}], v15 offset:1024')
                a(f'v_add_u32 v11, {LB - SYNC}, v11')
                a('ds_read_b128 v[16:19], v11')
            if i + DV - 1 < 32: rv(i + DV - 1)
            out = 2*(min(i+DV, 32) - (i+1))
            if i < 4: out = min(out, 2*(i+1))
            if 4 <= i < 8: out = 15
            if out < 15: a(f's_waitcnt lgkmcnt({out})')
            B = 32 + 4*(i % 8); P = 128 + 8*kt + 4*u; A = 64 + 16*ct
            a(f'v_mfma_f32_32x32x16_bf16 v[{A}:{A+15}], v[{P}:{P+3}], v[{B}:{B+3}], ' + ('0' if i < 4 else f'v[{A}:{A+15}]'))
        self.sig(C_PV, 14)
        self.stamp(6)
        a(f'''
        v_add_f32 v16, v16, v17
        v_add_f32 v18, v18, v19
        v_add_f32 v14, v16, v18            ; v13 = m, v14 = l
        v_bfe_u32 v2, v1, 4, 1
        v_lshl_add_u32 v2, v10, 2, v2
        v_lshlrev_b32 v2, 15, v2
        v_and_b32 v3, 15, v1
        v_lshl_add_u32 v2, v3, 4, v2
        s_lshl_b32 s48, s34, 20
        s_lshl_b32 s38, s35, 10
        s_add_u32 s48, s48, s38
        s_lshl_b32 s38, s33, 8
        s_add_u32 s48, s48, s38
        s_add_u32 s48, s48, {PART}
        ''')
        for k in range(8):
            r = 2*k; T = 128 + 4*k
            a(f'''v_cvt_pk_bf16_f32 v{T}, v{64+r}, v{80+r}
            v_cvt_pk_bf16_f32 v{T+1}, v{65+r}, v{81+r}
            v_cvt_pk_bf16_f32 v{T+2}, v{96+r}, v{112+r}
            v_cvt_pk_bf16_f32 v{T+3}, v{97+r}, v{113+r}
            s_add_u32 s38, s48, {((r & 3) + 8*(r >> 2)) << 15}
            v_permlane16_swap_b32 v{T}, v{T+1}
            v_permlane16_swap_b32 v{T+2}, v{T+3}
            buffer_store_dwordx4 v[{T}:{T+3}], v2, s[40:43], s38 offen sc1''')
        a(f'''
        v_mov_b32 v12, v13
        v_mov_b32 v13, v14
        v_lshlrev_b32 v4, 3, v9
        s_lshl_b32 s38, s33, 8
        s_add_u32 s49, s54, s38
        s_add_u32 s49, s49, {STAT}
        v_lshlrev_b32 v5, 10, v9
        s_lshl_b32 s50, s34, 15
        s_add_u32 s50, s50, s38
        s_lshl_b32 s39, s35, 3
        s_add_u32 s50, s50, s39
        s_add_u32 s50, s50, {STAT}
        v_lshrrev_b32 v6, 4, v1            ; g
        v_lshlrev_b32 v7, 13, v6
        v_lshl_add_u32 v7, v3, 4, v7
        s_lshl_b32 s51, s54, 5
        s_add_u32 s51, s51, s38
        s_add_u32 s51, s51, {PART}
        s_add_u32 s52, s51, 4096
        ''')
        self.slotmasks(20, 1, 16)
        a(f'''
        s_lshl_b32 s38, s33, 8
        s_add_u32 s38, s38, {COEF}
        v_lshl_add_u32 v24, v1, 2, s38
        v_bfe_u32 v16, v1, 3, 1
        v_lshlrev_b32 v16, 7, v16
        v_lshl_add_u32 v16, v6, 5, v16
        v_add_u32 v25, s38, v16
        v_bfe_u32 v16, v1, 4, 1
        v_lshlrev_b32 v16, 4, v16
        v_lshl_add_u32 v16, v3, 5, v16
        v_lshl_add_u32 v16, v10, 3, v16    ; 4*pos
        s_lshr_b32 s38, s34, 1
        s_lshl_b32 s38, s38, 7
        s_and_b32 s39, s34, 1
        s_lshl_b32 s39, s39, 4
        s_or_b32 s38, s38, s39
        v_xor_b32 v16, s38, v16
        s_lshl_b32 s38, s33, 10
        s_add_u32 s38, s38, {CLB}
        v_add_u32 v26, s38, v16
        s_lshl_b32 s38, s33, 2
        v_add_u32 v27, s38, v0
        s_waitcnt vmcnt(0)
        s_mov_b32 exec_hi, 0
        buffer_store_dwordx2 v[12:13], v4, s[40:43], s49 offen sc1
        s_mov_b64 exec, -1
        ''')
        self.stamp(7)
        self.srd(44, 22, 8192)
        a('s_cmp_lt_u32 s35, 28\ns_cbranch_scc1 L_A_st')
        self.silu_load(128, 16, 44)
        a('L_A_st:')
        a('buffer_load_dwordx2 v[12:13], v5, s[40:43], s50 offen sc1')
        self.budget()
        a(f'''s_waitcnt vmcnt(0)
        v_cmp_eq_u32 vcc, -1, v13
        s_cbranch_vccnz L_A_st''')
        self.stamp(8)
        for t in range(8):
            a(f'buffer_load_dwordx4 v[{32+4*t}:{35+4*t}], v7, s[40:43], s{51+(t>>2)} offen offset:{(t&3)*1024} sc1')
        a('v_mov_b32 v14, v12')
        self.red32('v_max_f32', 14, 15)
        a(f'''v_sub_f32 v12, v12, v14
        v_exp_f32 v12, v12
        v_mul_f32 v14, v12, v13''')
        self.red32('v_add_f32', 14, 15)
        a(f'''v_rcp_f32 v14, v14
        v_cmp_gt_u32 vcc, 32, v1
        v_mul_f32 v12, v12, v14
        v_cvt_pk_bf16_f32 v13, v12, v12
        v_and_b32 v14, 0xffff0000, v13
        v_sub_f32 v12, v12, v14
        v_cvt_pk_bf16_f32 v12, v12, v12
        v_cndmask_b32 v12, v12, v13, vcc
        ds_write_b32 v24, v12
        ds_read_b128 v[12:15], v25
        ds_read_b128 v[16:19], v25 offset:16
        s_waitcnt lgkmcnt(0)''')
        for t in range(8):
            for i in range(4): a(f'v_and_b32 v{64+4*t+i}, v{12+t}, v{20+i}')
        for t in range(8):
            a(f's_waitcnt vmcnt({7-t})')
            a(f'v_mfma_f32_16x16x32_bf16 v[28:31], v[{64+4*t}:{67+4*t}], v[{32+4*t}:{35+4*t}], ' + ('0' if t == 0 else 'v[28:31]'))
        a(f'''v_mov_b32 v16, 1
        v_permlane32_swap_b32 v28, v30
        v_permlane32_swap_b32 v29, v31
        v_add_f32 v28, v28, v30
        v_add_f32 v29, v29, v31
        v_cvt_pk_bf16_f32 v12, v28, 0
        v_cvt_pk_bf16_f32 v13, v29, 0
        v_cvt_pk_bf16_f32 v14, 0, v28
        v_cvt_pk_bf16_f32 v15, 0, v29
        ds_write2_b64 v26, v[12:13], v[14:15] offset0:0 offset1:64
        ds_write_b32 v27, v16 offset:{F_CL}''')
        self.stamp(9)
        a(f'''
        s_mov_b32 s38, 0x3f803f80
        v_and_b32 v20, s38, v20
        v_and_b32 v21, s38, v21
        v_and_b32 v22, s38, v22
        v_and_b32 v23, s38, v23
        v_bfe_u32 v12, v1, 2, 2            ; r'
        v_lshl_add_u32 v13, v6, 3, v12     ; 8g + r'
        v_lshrrev_b32 v14, 1, v12
        v_and_b32 v15, 1, v6
        v_lshl_or_b32 v14, v15, 1, v14     ; f1
        v_lshlrev_b32 v14, 5, v14
        v_lshl_add_u32 v14, v13, 7, v14
        v_and_b32 v16, 3, v1
        v_lshl_add_u32 v14, v16, 3, v14
        s_lshl_b32 s38, s33, 14
        v_add_u32 v24, s38, v14
        v_xor_b32 v25, 32, v24
        v_xor_b32 v26, 64, v24
        v_xor_b32 v27, 0x60, v24
        v_lshl_or_b32 v14, v15, 2, v12     ; f2
        v_lshlrev_b32 v14, 5, v14
        v_lshl_add_u32 v14, v13, 10, v14
        v_lshl_add_u32 v14, v16, 3, v14
        s_lshl_b32 s38, s33, 8
        s_add_u32 s38, s38, 65536
        v_add_u32 v2, s38, v14
        ''')
        a('s_cmp_lt_u32 s35, 28\ns_cbranch_scc1 L_A_w1')
        self.silu_calc(128, 12)
        a('L_A_w1:')
        self.wait(C_FFW, 8, 12, sleep=1)
        for s in range(4):
            for T in range(4):
                B = 64 + 16*s + 4*T
                a(f'ds_read_b64_tr_b16 v[{B}:{B+1}], v{24+T} offset:{s*4096}')
                a(f'ds_read_b64_tr_b16 v[{B+2}:{B+3}], v{24+T} offset:{s*4096+512}')
            a('s_waitcnt lgkmcnt(0)')
        a('s_cmp_lt_u32 s35, 28\ns_cbranch_scc1 L_A_F')
        for s in range(4):
            for T in range(4):
                B = 64 + 16*s + 4*T
                a(f'v_mfma_f32_16x16x32_bf16 v[{32+4*T}:{35+4*T}], v[{B}:{B+3}], v[{128+4*s}:{131+4*s}], ' + ('0' if s == 0 else f'v[{32+4*T}:{35+4*T}]'))
        a(f'''s_lshl_b32 s38, s33, 12
        s_add_u32 s38, s38, {MOP}
        v_lshl_add_u32 v12, v1, 4, s38''')
        for T in range(4): a(f'ds_write_b128 v12, v[{32+4*T}:{35+4*T}] offset:{T*1024}')
        self.sig(C_U, 13)
        a(f'''s_sub_u32 s38, s35, 28
        s_cmp_lg_u32 s38, s33
        s_cbranch_scc1 L_end
        v_and_b32 v12, 0x37, v1
        v_lshlrev_b32 v12, 4, v12
        v_bfe_u32 v13, v1, 3, 1
        v_lshl_add_u32 v12, v13, 11, v12
        v_add_u32 v12, {MOP}, v12
        v_and_b32 v14, 7, v1
        v_lshlrev_b32 v14, 10, v14
        v_lshl_add_u32 v14, v13, 6, v14
        v_lshl_add_u32 v14, v6, 4, v14
        s_lshl_b32 s38, s33, 13
        s_lshl_b32 s39, s34, 7
        s_add_u32 s38, s38, s39
        s_add_u32 s38, s38, {MOD}''')
        self.wait(C_U, 4, 13)
        for w in range(4):
            for T in range(2): a(f'ds_read_b128 v[{32+8*w+4*T}:{35+8*w+4*T}], v12 offset:{w*4096+T*1024}')
        a('s_waitcnt lgkmcnt(0)')
        for r in range(8):
            a(f'v_add_f32 v{32+r}, v{32+r}, v{40+r}\nv_add_f32 v{48+r}, v{48+r}, v{56+r}')
        for r in range(8): a(f'v_add_f32 v{32+r}, v{32+r}, v{48+r}')
        for r in range(4): a(f'v_cvt_pk_bf16_f32 v{32+r}, v{32+2*r}, v{33+2*r}')
        a('buffer_store_dwordx4 v[32:35], v14, s[40:43], s38 offen sc1')
        a('L_A_F:')
        self.srd(44, 4, 8192)
        a(f'''
        v_and_b32 v12, 1, v6
        v_lshlrev_b32 v13, 3, v12
        v_lshl_add_u32 v13, v3, 4, v13
        s_lshl_b32 s38, s34, 10
        s_lshl_b32 s39, s33, 8
        s_add_u32 s48, s38, s39
        buffer_load_dwordx2 v[128:129], v13, s[44:47], s48 offen
        v_and_b32 v14, 12, v3
        v_lshlrev_b32 v14, 4, v14          ; 128*blk + 64*(T>>1)
        v_and_b32 v15, 1, v3
        v_lshl_add_u32 v14, v15, 5, v14
        v_lshl_add_u32 v14, v12, 4, v14
        v_bfe_u32 v15, v3, 1, 1
        v_lshl_add_u32 v14, v15, 3, v14
        s_add_u32 s49, s48, {MOD}
        s_add_u32 s50, s49, 8192
        s_add_u32 s51, s49, 16384
        s_add_u32 s52, s49, 24576
        L_A_md:
        buffer_load_dwordx2 v[130:131], v14, s[40:43], s49 offen sc1
        buffer_load_dwordx2 v[132:133], v14, s[40:43], s50 offen sc1
        buffer_load_dwordx2 v[134:135], v14, s[40:43], s51 offen sc1
        buffer_load_dwordx2 v[136:137], v14, s[40:43], s52 offen sc1''')
        self.budget()
        a('s_waitcnt vmcnt(0)')
        self.check(130, 8, 15)
        a('s_cbranch_vccnz L_A_md')
        for k in range(5):
            for i in range(2):
                a(f'v_lshlrev_b32 v{140+4*k+2*i}, 16, v{128+2*k+i}\nv_and_b32 v{141+4*k+2*i}, 0xffff0000, v{128+2*k+i}')
        for i in range(4): a(f'v_add_f32 v{152+i}, 1.0, v{152+i}')
        a(f'''
        s_lshl_b32 s51, s34, 15
        s_add_u32 s51, s51, s39
        s_add_u32 s53, s51, {YP}
        s_add_u32 s51, s51, {OUTP}
        s_add_u32 s52, s51, 4096
        s_add_u32 s38, s39, {H2B}
        v_add_u32 v24, s38, v13            ; h2 write
        v_lshl_add_u32 v25, v6, 4, s38     ; h2 read
        v_mul_u32_u24 v26, {QROW}, v10
        s_lshl_b32 s38, s33, 2
        v_add3_u32 v26, v26, v0, s38
        s_add_u32 s38, s39, {UB}
        v_lshl_add_u32 v27, v6, 4, s38     ; u write
        v_and_b32 v12, 3, v1
        v_lshlrev_b32 v12, 8, v12
        v_bfe_u32 v15, v1, 3, 1
        v_lshl_add_u32 v12, v15, 7, v12
        v_bfe_u32 v15, v1, 2, 1
        v_lshl_add_u32 v12, v15, 4, v12
        v_lshl_add_u32 v12, v6, 5, v12
        v_add_u32 v4, {UB}, v12            ; u read
        v_lshlrev_b32 v5, 4, v3
        ''')
        self.wait(C_OUT, 4, 12)
        self.stamp(10)
        a('L_A_h4:')
        for t in range(8):
            a(f'buffer_load_dwordx4 v[{32+4*t}:{35+4*t}], v7, s[40:43], s{51+(t>>2)} offen offset:{(t&3)*1024} sc1')
        self.budget()
        for t in range(8):
            a(f's_waitcnt vmcnt({7-t})')
            a(f'v_mfma_f32_16x16x32_bf16 v[28:31], v[20:23], v[{32+4*t}:{35+4*t}], ' + ('0' if t == 0 else 'v[28:31]'))
            r = 32 + 4*t
            if t == 0: a(f'v_max3_u32 v12, v{r}, v{r+1}, v{r+2}\nv_max_u32 v12, v12, v{r+3}')
            else: a(f'v_max3_u32 v12, v12, v{r}, v{r+1}\nv_max3_u32 v12, v12, v{r+2}, v{r+3}')
        a('v_cmp_eq_u32 vcc, -1, v12\ns_cbranch_vccnz L_A_h4')
        self.stamp(11)
        for i in range(4): a(f'v_fma_f32 v{28+i}, v{28+i}, v{144+i}, v{140+i}')
        a('s_cmp_ge_u32 s35, 28\ns_cbranch_scc1 L_A_fin')
        a(f'''
        v_add_f32 v12, v28, v29
        v_mul_f32 v13, v28, v28
        v_add_f32 v14, v30, v31
        v_fmac_f32 v13, v29, v29
        v_cmp_gt_u32 vcc, 32, v1
        v_fmac_f32 v13, v30, v30
        v_add_f32 v12, v12, v14
        v_fmac_f32 v13, v31, v31
        v_cndmask_b32 v12, v13, v12, vcc''')
        self.red32('v_add_f32', 12, 13)
        a(f'''ds_write_b32 v26, v12 offset:{LN1}
        L_A_ln:
        ds_read_b128 v[12:15], v0 offset:{LN1}
        ds_read_b128 v[16:19], v0 offset:{LN2}''')
        self.budget()
        a('s_waitcnt lgkmcnt(0)')
        self.check(12, 8, 32)
        a(f'''s_cbranch_vccnz L_A_ln
        v_add_f32 v12, v12, v13
        v_add_f32 v16, v16, v17
        v_add_f32 v14, v14, v15
        v_add_f32 v18, v18, v19
        s_mov_b32 s38, {f32(1/512)}
        v_add_f32 v12, v12, v14
        v_add_f32 v16, v16, v18
        v_mul_f32 v12, s38, v12
        v_mul_f32 v16, s38, v16
        v_fma_f32 v16, -v12, v12, v16
        v_max_f32 v16, 0, v16
        v_add_f32 v16, {f32(1e-5)}, v16
        v_rsq_f32 v16, v16''')
        for i in range(4): a(f'v_sub_f32 v{28+i}, v{28+i}, v12')
        for i in range(4): a(f'v_mul_f32 v{152+i}, v{152+i}, v16')
        for i in range(4): a(f'v_fma_f32 v{28+i}, v{28+i}, v{152+i}, v{148+i}')
        a(f'''v_cvt_pk_bf16_f32 v28, v28, v29
        v_cvt_pk_bf16_f32 v29, v30, v31
        ds_write_b64 v24, v[28:29]''')
        for s in range(4): a(f'ds_read_b128 v[{128+4*s}:{131+4*s}], v25 offset:{64*s}')
        for T in range(1, 8): a(f'v_xor_b32 v{12+T}, {32*T}, v2')
        for s in range(4):
            a(f's_waitcnt lgkmcnt({3-s})')
            for T in range(4):
                B = 64 + 16*s + 4*T
                a(f'v_mfma_f32_16x16x32_bf16 v[{32+4*T}:{35+4*T}], v[{B}:{B+3}], v[{128+4*s}:{131+4*s}], ' + ('0' if s == 0 else f'v[{32+4*T}:{35+4*T}]'))
        def w2rd(s, T):
            B = 64 + 32*s + 4*T; ad = 2 if T == 0 else 12 + T
            a(f'ds_read_b64_tr_b16 v[{B}:{B+1}], v{ad} offset:{s*32768}')
            a(f'ds_read_b64_tr_b16 v[{B+2}:{B+3}], v{ad} offset:{s*32768+4096}')
        for T in range(4): w2rd(0, T)
        a('s_mov_b32 s38, 0x00010001\ns_mov_b32 s39, 0x00010001\ns_mov_b64 exec, s[38:39]')
        for T in range(4): a(f'ds_write_b128 v27, v[{32+4*T}:{35+4*T}] offset:{64*T}')
        a('s_mov_b64 exec, -1')
        self.sig(C_U, 12)
        a('s_waitcnt lgkmcnt(6)')
        for T in range(4, 8): w2rd(0, T)
        a('s_waitcnt lgkmcnt(4)')
        for T in range(4): w2rd(1, T)
        a('s_waitcnt lgkmcnt(4)')
        for T in range(4, 8): w2rd(1, T)
        self.wait(C_U, 4, 12)
        a('ds_read_b128 v[28:31], v4\ns_waitcnt lgkmcnt(0)')
        for m in ('quad_perm:[1,0,3,2]', 'quad_perm:[2,3,0,1]'):
            for i in range(4): a(f'v_add_f32_dpp v{28+i}, v{28+i}, v{28+i} {m} {DPPF}')
        for i in range(4): a(f'v_max_f32 v{28+i}, 0, v{28+i}')
        a('v_cvt_pk_bf16_f32 v28, v28, v29\nv_cvt_pk_bf16_f32 v29, v30, v31')
        for k in range(4):
            for i in range(2): a(f'v_mov_b32_dpp v{128+2*k+i}, v{28+i} row_newbcast:{4*k} {DPPF}')
        for s in range(2):
            for T in range(8):
                B = 64 + 32*s + 4*T
                a(f'v_mfma_f32_16x16x32_bf16 v[{32+4*T}:{35+4*T}], v[{128+4*s}:{131+4*s}], v[{B}:{B+3}], ' + ('0' if s == 0 else f'v[{32+4*T}:{35+4*T}]'))
        a(f's_lshl_b32 s38, s35, 10\ns_add_u32 s38, s38, s53')
        for k in range(4): a(f'v_cvt_pk_bf16_f32 v{28+k}, v{32+8*k}, v{36+8*k}')
        a(f'''s_mov_b64 exec, 0xffff
        buffer_store_dwordx4 v[28:31], v5, s[40:43], s38 offen sc1''')
        self.stamp(12)
        a('s_branch L_end')
        a('L_A_fin:')
        self.srd(44, 26, 8192)
        a(f'''
        v_and_b32 v12, 7, v1
        v_lshlrev_b32 v13, 1, v12
        v_lshrrev_b32 v14, 1, v6
        v_add_u32 v13, v13, v14
        v_and_b32 v14, 1, v6
        v_lshl_add_u32 v13, v14, 4, v13
        v_lshlrev_b32 v13, 2, v13''')
        for i in range(4):
            a(f'ds_bpermute_b32 v{140+i}, v13, v{28+i}\nds_bpermute_b32 v{144+i}, v13, v{156+i}')
        a(f'''
        v_lshlrev_b32 v4, 5, v12
        v_lshl_add_u32 v4, v6, 3, v4
        v_mul_u32_u24 v7, 7168, v6
        v_lshl_add_u32 v7, v3, 4, v7
        s_add_u32 s52, s53, 4096
        s_waitcnt lgkmcnt(0)
        L_A_h5:''')
        for t in range(7):
            a(f'buffer_load_dwordx4 v[{32+4*t}:{35+4*t}], v7, s[40:43], s{53-(t>>2)} offen offset:{(t&3)*1024} sc1')
        self.budget()
        for t in range(7):
            a(f's_waitcnt vmcnt({6-t})')
            a(f'v_mfma_f32_16x16x32_bf16 v[28:31], v[{32+4*t}:{35+4*t}], v[20:23], ' + ('0' if t == 0 else 'v[28:31]'))
            r = 32 + 4*t
            if t == 0: a(f'v_max3_u32 v12, v{r}, v{r+1}, v{r+2}\nv_max_u32 v12, v12, v{r+3}')
            else: a(f'v_max3_u32 v12, v12, v{r}, v{r+1}\nv_max3_u32 v12, v12, v{r+2}, v{r+3}')
        a('v_cmp_eq_u32 vcc, -1, v12\ns_cbranch_vccnz L_A_h5')
        self.stamp(12)
        for i in range(4): a(f'v_fma_f32 v{28+i}, v{28+i}, v{144+i}, v{140+i}')
        a(f'''v_cvt_pk_bf16_f32 v28, v28, v29
        v_cvt_pk_bf16_f32 v29, v30, v31
        s_mov_b32 s38, 0x00ff00ff
        s_mov_b32 s39, 0x00ff00ff
        s_mov_b64 exec, s[38:39]
        buffer_store_dwordx2 v[28:29], v4, s[44:47], s48 offen''')
        self.stamp(13)
        a('s_branch L_end')

    def ffn_dma(self, tag):
        a = self.a; o = self.o
        a(f'''
        s_sub_u32 s56, s32, 4              ; omega
        s_cmp_lt_u32 s35, 28
        s_cselect_b32 s48, s18, s24
        s_cselect_b32 s49, s19, s25
        s_movk_i32 s57, 6144
        s_cselect_b32 s57, 3584, s57
        s_mul_i32 s50, s57, 512
        s_mov_b32 s51, 0x20000
        s_lshl_b32 s58, s35, 7
        s_sub_u32 s38, s35, 26
        s_lshl_b32 s38, s38, 10
        s_lshl_b32 s39, s34, 7
        s_add_u32 s38, s38, s39
        s_cmp_lt_u32 s35, 28
        s_cselect_b32 s58, s58, s38
        v_lshrrev_b32 v4, 3, v1
        v_mul_lo_u32 v5, v4, s57
        v_bfe_u32 v4, v4, 1, 1
        s_and_b32 s38, s56, 1
        s_lshl_b32 s38, s38, 1
        v_or_b32 v4, s38, v4
        v_lshlrev_b32 v4, 1, v4
        v_and_b32 v6, 7, v1
        v_xor_b32 v4, v4, v6
        v_lshl_add_u32 v4, v4, 4, v5       ; W1 voffset
        s_lshl_b32 s38, s56, 5
        v_lshlrev_b32 v5, 4, v1
        v_xor_b32 v5, s38, v5              ; W2 voffset
        s_lshl_b32 s57, s57, 3
        ''')
        self.wait(C_PV, 4, 6, sleep=1)
        a(f'''s_mov_b32 s59, 0
        L_{tag}_f1:
        s_xor_b32 s38, s59, s34
        s_lshl_b32 s38, s38, 3
        s_add_u32 s38, s38, s56
        s_lshl_b32 m0, s38, 10
        s_mul_i32 s38, s38, s57
        s_add_u32 s38, s38, s58
        buffer_load_dwordx4 v4, s[48:51], s38 offen{o['nt_w']} lds
        s_waitcnt vmcnt({o['thr_t']})
        s_add_u32 s59, s59, 1
        s_cmp_lt_u32 s59, 8
        s_cbranch_scc1 L_{tag}_f1
        s_cmp_ge_u32 s35, 28
        s_cbranch_scc1 L_{tag}_f3
        s_mov_b32 s48, s20
        s_mov_b32 s49, s21
        s_and_b32 s38, s56, 3
        s_lshr_b32 s39, s56, 2
        s_lshl_b32 s39, s39, 3
        s_add_u32 s56, s38, s39
        s_lshl_b32 s58, s35, 16
        s_mov_b32 s59, 0
        L_{tag}_f2:
        s_xor_b32 s38, s59, s34
        s_and_b32 s39, s38, 1
        s_lshl_b32 s39, s39, 2
        s_lshr_b32 s38, s38, 1
        s_lshl_b32 s38, s38, 4
        s_add_u32 s38, s38, s39
        s_add_u32 s38, s38, s56
        s_lshl_b32 s38, s38, 10
        s_add_u32 m0, s38, 65536
        s_add_u32 s38, s38, s58
        buffer_load_dwordx4 v5, s[48:51], s38 offen{o['nt_w']} lds
        s_waitcnt vmcnt({o['thr_t']})
        s_add_u32 s59, s59, 1
        s_cmp_lt_u32 s59, 8
        s_cbranch_scc1 L_{tag}_f2
        L_{tag}_f3:
        ''')

    def groupB(self):
        a = self.a; o = self.o
        W = 40
        a('L_B:')
        self.srd(44, 8, 4194304)
        a(f'''
        v_lshrrev_b32 v4, 4, v1
        v_and_b32 v5, 15, v1
        v_lshlrev_b32 v2, 18, v4
        v_lshl_add_u32 v2, v5, 4, v2
        s_lshl_b32 s48, s33, 20
        s_lshl_b32 s38, s35, 8
        s_add_u32 s48, s48, s38
        s_and_b32 s49, s34, 3              ; rot
        s_barrier
        ''')
        n = 0
        for u in range(4):
            a(f's_xor_b32 s38, s49, {u}\ns_lshl_b32 s38, s38, 16\ns_add_u32 s38, s38, s48')
            for k in range(8):
                r = W + 32*u + 4*k
                a(f'buffer_load_dwordx4 v[{r}:{r+3}], v2, s[44:47], s38 offen{o["nt_w"]}')
                if k < 7: a('s_add_u32 s38, s38, 8192')
                n += 1
                if n == o['nb']: self.sig(C_WQ, 6)
        self.stamp(1)
        a(f'''
        v_and_b32 v6, 31, v1
        v_lshlrev_b32 v6, 3, v6
        v_lshrrev_b32 v5, 1, v5
        v_lshlrev_b32 v5, 4, v5
        v_lshl_add_u32 v7, v4, 9, v5
        s_lshl_b32 s38, s33, 11''')
        for u in range(4):
            a(f's_xor_b32 s{50+u}, s49, {u}\ns_lshl_b32 s{50+u}, s{50+u}, 7\ns_add_u32 s{50+u}, s{50+u}, s38')
        a(f'''
        v_and_b32 v4, 1, v1
        v_cmp_eq_u32 vcc, 1, v4
        v_mov_b32 v2, 0x0c0c0100
        v_mov_b32 v4, 0x01000c0c
        v_cndmask_b32 v2, v2, v4, vcc
        v_mov_b32 v3, 0x0c0c0302
        v_mov_b32 v4, 0x03020c0c
        v_cndmask_b32 v3, v3, v4, vcc
        L_B_fl:
        global_load_dword v4, v6, s[28:29] sc1''')
        self.budget()
        a('''s_waitcnt vmcnt(0)
        v_cmp_eq_u32 vcc, 0, v4
        s_cbranch_vccnz L_B_fl''')
        self.stamp(2)
        def hload():
            for u in range(4): a(f'buffer_load_dwordx4 v[{8+4*u}:{11+4*u}], v7, s[40:43], s{50+u} offen sc1')
        hload()
        for t in range(8): self.swaps(W + 16*t)
        a('s_branch L_B_h1\nL_B_h0:')
        hload()
        self.budget()
        a('L_B_h1:\ns_waitcnt vmcnt(0)')
        self.check(8, 16, 24)
        a('s_cbranch_vccnz L_B_h0')
        self.stamp(3)
        def perm(t, i):
            dst = (4 if t == 0 else W + 16*(t-1)) + i
            src = 8 + 2*t + (i >> 1)
            a(f'v_perm_b32 v{dst}, v{src}, v{src}, v{2+(i&1)}')
        for i in range(4): perm(0, i)
        for t in range(8):
            op = 4 if t == 0 else W + 16*(t-1)
            for p in range(4):
                r = W + 16*t + 4*p
                a(f'v_mfma_f32_16x16x32_bf16 v[{24+4*p}:{27+4*p}], v[{r}:{r+3}], v[{op}:{op+3}], ' + ('0' if t == 0 else f'v[{24+4*p}:{27+4*p}]'))
                if t < 7 and p < 2: perm(t+1, 2*p); perm(t+1, 2*p+1)
        a(f'''s_lshl_b32 s38, s33, 12
        s_add_u32 s38, s38, {S2P}
        v_lshl_add_u32 v4, v1, 4, s38''')
        for p in range(4): a(f'ds_write_b128 v4, v[{24+4*p}:{27+4*p}] offset:{p*1024}')
        self.sig(C_S2, 5)
        self.stamp(4)
        a(f'''
        v_lshlrev_b32 v2, 4, v1
        s_lshl_b32 s50, s34, 15
        s_lshl_b32 s38, s33, 13
        s_add_u32 s50, s50, s38
        s_add_u32 s50, s50, {QL}
        s_add_u32 s51, s50, 4096
        s_mul_i32 s38, s33, {8*QROW}
        s_add_u32 s38, s38, {QR}
        v_add_u32 v3, s38, v2''')
        self.wait(C_QP, 1, 5)
        self.stamp(5)
        a('L_B_q:')
        for t in range(8):
            a(f'buffer_load_dwordx4 v[{W+4*t}:{W+3+4*t}], v2, s[40:43], s{50+(t>>2)} offen offset:{(t&3)*1024} sc1')
        self.budget()
        a('s_waitcnt vmcnt(0)')
        self.check(W, 32, 5)
        a('''s_cbranch_vccnz L_B_q
        s_mov_b32 s38, -1
        s_mov_b32 s39, 0x3fffffff
        s_mov_b64 exec, s[38:39]''')
        for t in range(8): a(f'ds_write_b128 v3, v[{W+4*t}:{W+3+4*t}] offset:{t*QROW}')
        a('s_mov_b64 exec, -1')
        self.sig(C_Q, 5)
        self.stamp(6)
        self.srd(44, 12, 4194304)
        a(f'''
        v_lshrrev_b32 v4, 4, v1
        v_and_b32 v5, 15, v1
        v_lshlrev_b32 v2, 13, v4
        v_lshl_add_u32 v2, v5, 4, v2''')
        self.wait(C_ISS, 4, 6, sleep=1)
        for t in range(8):
            a(f'''s_xor_b32 s38, s34, {t}
            s_and_b32 s39, s38, 1
            s_lshl_b32 s39, s39, 19
            s_lshr_b32 s38, s38, 1
            s_lshl_b32 s38, s38, 15
            s_add_u32 s38, s38, s39
            s_add_u32 s38, s38, s48''')
            for i in range(4):
                r = W + 16*t + 4*i
                a(f's_add_u32 s39, s38, {(32*(i&1) + 16*(i>>1))*8192}')
                a(f'buffer_load_dwordx4 v[{r}:{r+3}], v2, s[44:47], s39 offen{o["nt_w"]}')
                if t or i == 3: a(f's_waitcnt vmcnt({o["thr_t"]})')
            if t: self.swaps(W + 16*(t-1))
        self.stamp(7)
        self.ffn_dma('B')
        self.swaps(W + 16*7)
        a(f'''
        v_and_b32 v2, 1, v1
        v_lshlrev_b32 v2, 9, v2
        v_lshrrev_b32 v4, 4, v1
        v_lshl_add_u32 v2, v4, 5, v2
        s_lshl_b32 s38, s33, 10
        s_add_u32 s38, s38, {CLB}
        v_add_u32 v2, s38, v2
        s_lshl_b32 s38, s33, 9
        s_add_u32 s38, s38, {CTXB}
        v_lshl_add_u32 v3, v1, 5, s38
        s_lshl_b32 s38, s33, 2
        v_add_u32 v5, s38, v0
        s_waitcnt vmcnt(0)''')
        self.sig(C_FFW, 6)
        self.stamp(8)
        self.wait(F_CL, 1, 6, addr='v5')
        self.stamp(9)
        def opr(t): return 4 + 4*t if t < 5 else W + 4*(t-5)
        def rdop(t): a(f'ds_read_b128 v[{opr(t)}:{opr(t)+3}], v2 offset:{128*(t>>1) + 16*(t&1)}')
        for t in range(5): rdop(t)
        for t in range(8):
            a(f's_waitcnt lgkmcnt({4 if t == 0 else 7-t})')
            for p in range(4):
                r = W + 16*t + 4*p
                a(f'v_mfma_f32_16x16x32_bf16 v[{24+4*p}:{27+4*p}], v[{opr(t)}:{opr(t)+3}], v[{r}:{r+3}], ' + ('0' if t == 0 else f'v[{24+4*p}:{27+4*p}]'))
            if t == 0:
                for u in range(5, 8): rdop(u)
        a(f'''s_mov_b64 exec, 0xffff
        ds_write2_b64 v3, v[24:25], v[28:29] offset0:0 offset1:1
        ds_write2_b64 v3, v[32:33], v[36:37] offset0:2 offset1:3
        s_mov_b64 exec, -1''')
        self.sig(C_CTX, 6)
        self.stamp(10)
        a('s_branch L_end')

    def groupC(self):
        a = self.a; o = self.o
        W = 40
        a('L_C:')
        a('s_cmp_lt_u32 s2, 32\ns_cbranch_scc1 L_C_s1\ns_barrier\ns_branch L_C_s1d\nL_C_s1:')
        self.srd(44, 22, 8192)
        self.silu_load(8, 2, 44)
        self.srd(44, 4, 8192)
        self.srd(48, 24, 3145728)
        for i in range(16): a(f'v_mov_b32 v{24+i}, 0x3f803f80')
        a(f'''
        v_and_b32 v2, 15, v1
        v_lshlrev_b32 v2, 10, v2
        v_lshrrev_b32 v3, 4, v1
        v_lshl_add_u32 v4, v3, 4, v2
        v_lshl_add_u32 v5, v3, 3, v2
        s_lshl_b32 s39, s55, 5
        s_mov_b32 s56, 0x00ff00ff
        s_mov_b32 s57, 0x00ff00ff
        s_mov_b64 exec, s[56:57]''')
        for s in range(4): a(f'buffer_load_dwordx4 v[{24+4*s}:{27+4*s}], v4, s[44:47], s38 offen offset:{64*s}')
        a(f'''buffer_load_dwordx2 v[6:7], v5, s[44:47], s39 offen
        s_mov_b64 exec, -1
        v_lshrrev_b32 v2, 2, v1
        v_mul_u32_u24 v4, 6144, v2
        v_lshrrev_b32 v2, 5, v1
        v_bfe_u32 v5, v1, 1, 1
        v_xor_b32 v2, v2, v5
        v_lshl_add_u32 v4, v2, 10, v4
        v_and_b32 v2, 1, v1
        v_lshl_add_u32 v4, v2, 4, v4
        s_mul_i32 s58, s33, {128*6144}
        s_add_u32 s58, s58, s39
        s_lshl_b32 s59, s33, 13
        s_add_u32 s59, s59, {S1W}
        s_lshl_b32 s60, s37, 1''')
        for i in range(8):
            a(f'''s_xor_b32 s38, s60, {i}
            s_lshl_b32 s39, s38, 10
            s_add_u32 m0, s39, s59
            s_mul_i32 s38, s38, {16*6144}
            s_add_u32 s38, s38, s58
            buffer_load_dwordx4 v4, s[48:51], s38 offen{o['nt_w']} lds''')
        a(f'''s_barrier
        v_bfe_u32 v2, v1, 2, 2
        v_lshl_add_u32 v2, v3, 3, v2
        v_lshlrev_b32 v2, 6, v2
        v_and_b32 v4, 1, v3
        v_lshl_add_u32 v2, v4, 5, v2
        v_and_b32 v4, 3, v1
        v_lshl_add_u32 v2, v4, 3, v2
        v_add_u32 v2, s59, v2
        v_xor_b32 v3, 32, v2
        s_waitcnt vmcnt(13)''')
        self.stamp(1)
        self.silu_calc(8, 40)
        a('s_waitcnt vmcnt(8)')
        for s in range(4):
            a(f'v_mfma_f32_16x16x32_bf16 v[88:91], v[{24+4*s}:{27+4*s}], v[{24+4*s}:{27+4*s}], ' + ('0' if s == 0 else 'v[88:91]'))
        a(f'''s_mul_i32 s38, s33, 3072
        s_add_u32 s38, s38, {S1P}
        v_lshl_add_u32 v4, v1, 4, s38
        s_waitcnt vmcnt(0)''')
        self.stamp(2)
        for s in range(4):
            for u in range(2):
                B = 48 + 8*s + 4*u
                a(f'ds_read_b64_tr_b16 v[{B}:{B+1}], v{2+u} offset:{s*2048}')
                a(f'ds_read_b64_tr_b16 v[{B+2}:{B+3}], v{2+u} offset:{s*2048+256}')
            if s == 2: a('s_waitcnt lgkmcnt(8)')
        for s in range(4):
            a(f's_waitcnt lgkmcnt({12-4*s})')
            for u in range(2):
                B = 48 + 8*s + 4*u
                a(f'v_mfma_f32_16x16x32_bf16 v[{80+4*u}:{83+4*u}], v[{B}:{B+3}], v[{8+4*s}:{11+4*s}], ' + ('0' if s == 0 else f'v[{80+4*u}:{83+4*u}]'))
        a('ds_write_b128 v4, v[88:91] offset:2048')
        for u in range(2): a(f'ds_write_b128 v4, v[{80+4*u}:{83+4*u}] offset:{u*1024}')
        self.sig(C_S1, 5)
        a(f'''s_cmp_lg_u32 s33, 0
        s_cbranch_scc1 L_C_s1d
        v_and_b32 v2, 7, v1
        v_lshrrev_b32 v3, 2, v2
        v_lshl_add_u32 v3, v3, 4, v2
        v_lshlrev_b32 v3, 4, v3
        v_and_b32 v5, 3, v1
        v_lshl_add_u32 v3, v5, 2, v3
        v_add_u32 v3, {S1P + 2048}, v3     ; sumsq
        v_lshlrev_b32 v2, 4, v2
        v_add_u32 v8, {S1P + 2048 + 512}, v2
        v_lshrrev_b32 v9, 5, v1
        v_lshl_add_u32 v2, v9, 7, v2
        v_bfe_u32 v9, v1, 4, 1
        v_lshl_add_u32 v2, v9, 3, v2
        v_lshlrev_b32 v12, 16, v6
        v_and_b32 v13, 0xffff0000, v6
        v_lshlrev_b32 v14, 16, v7
        v_and_b32 v15, 0xffff0000, v7
        s_lshl_b32 s39, s55, 8''')
        self.wait(C_S1, 4, 5)
        for w in range(4):
            a(f'ds_read_b32 v{16+w}, v8 offset:{w*3072}\nds_read_b32 v{20+w}, v3 offset:{w*3072}')
        for w in range(1, 4):
            for u in range(2): a(f'ds_read_b128 v[{40+8*w+4*u}:{43+8*w+4*u}], v4 offset:{w*3072+u*1024}')
        a(f'''s_mov_b32 s38, {f32(1/512)}
        s_waitcnt lgkmcnt(6)
        v_add_f32 v16, v16, v17
        v_add_f32 v20, v20, v21
        v_add_f32 v18, v18, v19
        v_add_f32 v22, v22, v23
        v_add_f32 v16, v16, v18
        v_add_f32 v20, v20, v22
        v_mul_f32 v16, s38, v16
        v_mul_f32 v20, s38, v20
        v_fma_f32 v20, -v16, v16, v20
        v_max_f32 v20, 0, v20
        v_add_f32 v20, {f32(1e-5)}, v20
        v_rsq_f32 v20, v20''')
        for i in range(4): a(f'v_sub_f32 v{12+i}, v{12+i}, v16')
        for i in range(4): a(f'v_mul_f32 v{12+i}, v{12+i}, v20')
        a('s_waitcnt lgkmcnt(0)')
        for r in range(8): a(f'v_add_f32 v{80+r}, v{80+r}, v{48+r}\nv_add_f32 v{56+r}, v{56+r}, v{64+r}')
        for r in range(8): a(f'v_add_f32 v{80+r}, v{80+r}, v{56+r}')
        for i in range(4): a(f'v_add_f32 v{80+i}, v{80+i}, v{12+i}')
        for i in range(4): a(f'v_fmac_f32 v{80+i}, v{84+i}, v{12+i}')
        a(f'''v_cvt_pk_bf16_f32 v80, v80, v81
        v_cvt_pk_bf16_f32 v81, v82, v83
        s_mov_b64 exec, s[56:57]
        buffer_store_dwordx2 v[80:81], v2, s[40:43], s39 offen sc1
        s_mov_b64 exec, -1''')
        self.stamp(3)
        a('L_C_s1d:')
        a('s_cmp_eq_u32 s33, 1\ns_cbranch_scc1 L_C_s3')
        self.sig(C_LATE, 5)
        a('s_branch L_C_t\nL_C_s3:')
        self.srd(44, 10, 4194304)
        a(f'''
        v_lshrrev_b32 v3, 4, v1
        v_and_b32 v2, 15, v1
        v_xor_b32 v4, v2, v3
        v_lshlrev_b32 v4, 4, v4
        v_lshl_add_u32 v4, v3, 13, v4
        v_xor_b32 v5, 64, v4
        v_xor_b32 v6, 0x80, v4
        v_xor_b32 v7, 0xc0, v4
        s_lshl_b32 s48, s34, 19
        s_lshl_b32 s38, s35, 8
        s_add_u32 s48, s48, s38''')
        for i in range(16):
            T = i >> 2
            a(f'''s_mov_b32 m0, {WUK + i*1024}
            s_add_u32 s38, s48, {(16*(i&3) + 8*(T>>1) + 4*(T&1))*8192}
            buffer_load_dwordx4 v{4+(i&3)}, s[44:47], s38 offen{o['nt_w']} lds''')
        a(f'''
        v_mov_b32 v8, -1
        v_mov_b32 v9, -1
        v_mov_b32 v10, -1
        v_mov_b32 v11, -1
        v_lshlrev_b32 v12, 4, v1
        s_add_u32 s38, s54, {STAT}
        buffer_store_dwordx4 v[8:11], v12, s[40:43], s38 offen sc1
        s_add_u32 s38, s54, {OUTP}
        buffer_store_dwordx4 v[8:11], v12, s[40:43], s38 offen sc1
        s_add_u32 s38, s54, {YP}
        buffer_store_dwordx4 v[8:11], v12, s[40:43], s38 offen sc1
        s_cmp_lt_u32 s35, 28
        s_cbranch_scc1 L_C_nm
        v_lshrrev_b32 v13, 3, v1
        v_lshlrev_b32 v13, 10, v13
        v_and_b32 v14, 7, v1
        v_lshl_add_u32 v13, v14, 4, v13
        s_sub_u32 s38, s35, 28
        s_lshl_b32 s38, s38, 13
        s_lshl_b32 s39, s34, 7
        s_add_u32 s38, s38, s39
        s_add_u32 s38, s38, {MOD}
        buffer_store_dwordx4 v[8:11], v13, s[40:43], s38 offen sc1
        L_C_nm:
        v_lshlrev_b32 v4, 2, v3
        v_xor_b32 v4, v4, v2
        v_lshlrev_b32 v4, 4, v4
        v_lshl_add_u32 v4, v2, 8, v4
        v_add_u32 v4, {WUK}, v4
        v_xor_b32 v5, 16, v4
        v_xor_b32 v6, 32, v4
        v_xor_b32 v7, 48, v4
        v_add_u32 v12, {S2P}, v12
        v_and_b32 v13, 1, v1
        v_lshlrev_b32 v14, 4, v13
        v_lshl_add_u32 v15, v3, 5, v14
        v_lshrrev_b32 v2, 1, v2
        v_lshl_add_u32 v15, v2, 15, v15
        s_mov_b32 s38, 0xffff
        v_lshlrev_b32 v14, v14, s38
        v_cmp_eq_u32 s[56:57], 1, v13
        s_lshl_b32 s49, s35, 10
        s_lshl_b32 s38, s34, 7
        s_add_u32 s49, s49, s38
        s_add_u32 s49, s49, {QL}
        s_mov_b32 s50, {f32(SC)}
        s_waitcnt vmcnt(0)''')
        for T in range(4):
            for j in range(4): a(f'ds_read_b128 v[{104+16*T+4*j}:{107+16*T+4*j}], v{4+j} offset:{T*4096}')
            a('s_waitcnt lgkmcnt(0)')
        self.sig(C_LATE, 5)
        self.stamp(4)
        self.wait(C_S2, 4, 5)
        self.stamp(5)
        for p in range(4):
            for w in range(4): a(f'ds_read_b128 v[{40+16*p+4*w}:{43+16*p+4*w}], v12 offset:{(w*4+p)*1024}')
            if p == 2: a('s_waitcnt lgkmcnt(8)')
        for p in range(4):
            a(f's_waitcnt lgkmcnt({12-4*p})')
            r = 40 + 16*p
            for j in range(4): a(f'v_add_f32 v{r+j}, v{r+j}, v{r+4+j}\nv_add_f32 v{r+8+j}, v{r+8+j}, v{r+12+j}')
            for j in range(4): a(f'v_add_f32 v{r+j}, v{r+j}, v{r+8+j}')
            for j in range(4): a(f'v_cvt_pk_bf16_f32 v{r+j}, v{r+j}, v{r+j}')
            for j in range(4): a(f'v_and_b32 v{16+4*j+p}, v{r+j}, v14')
        for j in range(4):
            for T in range(4):
                r = 104 + 16*T + 4*j
                a(f'v_mfma_f32_16x16x32_bf16 v[{40+4*T}:{43+4*T}], v[{r}:{r+3}], v[{16+4*j}:{19+4*j}], ' + ('0' if j == 0 else f'v[{40+4*T}:{43+4*T}]'))
        for r in range(16): a(f'v_add_f32_dpp v{40+r}, v{40+r}, v{40+r} quad_perm:[1,0,3,2] {DPPF}')
        for r in range(8): a(f'v_cndmask_b32 v{40+r}, v{40+r}, v{48+r}, s[56:57]')
        for r in range(8): a(f'v_mul_f32 v{40+r}, s50, v{40+r}')
        for r in range(4): a(f'v_cvt_pk_bf16_f32 v{40+r}, v{40+2*r}, v{41+2*r}')
        a('buffer_store_dwordx4 v[40:43], v15, s[40:43], s49 offen sc1')
        self.stamp(6)
        a('s_waitcnt vmcnt(0)')
        self.sig(C_QP, 5)
        a('L_C_t:')
        self.srd(44, 14, 4194304)
        a(f'''
        v_lshrrev_b32 v4, 4, v1
        v_and_b32 v5, 15, v1
        v_lshlrev_b32 v2, 15, v4
        v_lshl_add_u32 v2, v5, 4, v2
        s_lshl_b32 s48, s35, 17
        s_lshl_b32 s38, s33, 8
        s_add_u32 s48, s48, s38''')
        self.wait(C_ISS, 4, 6, sleep=1)
        for t in range(8):
            a(f's_xor_b32 s38, s34, {t}\ns_lshl_b32 s38, s38, 12\ns_add_u32 s38, s38, s48')
            for i in range(4):
                r = W + 16*t + 4*i
                a(f'buffer_load_dwordx4 v[{r}:{r+3}], v2, s[44:47], s38 offen offset:{1024*i}{o["nt_w"]}')
                if t or i == 3: a(f's_waitcnt vmcnt({o["thr_t"]})')
            if t: self.swaps(W + 16*(t-1))
        self.stamp(7)
        self.ffn_dma('C')
        self.swaps(W + 16*7)
        a(f'''
        v_and_b32 v2, 7, v1
        v_xor_b32 v2, s34, v2
        v_lshlrev_b32 v2, 4, v2
        v_lshrrev_b32 v4, 4, v1
        v_lshl_add_u32 v2, v4, 7, v2
        v_bfe_u32 v4, v1, 3, 1
        v_lshl_add_u32 v2, v4, 10, v2
        v_add_u32 v2, {CTXB}, v2
        v_and_b32 v3, 1, v1
        v_lshlrev_b32 v3, 4, v3
        s_mov_b32 s38, 0xffff
        v_lshlrev_b32 v3, v3, s38
        v_lshlrev_b32 v4, 4, v1
        s_lshl_b32 s38, s33, 8
        s_add_u32 s48, s54, s38
        s_add_u32 s48, s48, {OUTP}
        s_waitcnt vmcnt(0)''')
        self.sig(C_FFW, 6)
        self.stamp(8)
        self.wait(C_CTX, 4, 6)
        self.stamp(9)
        a('ds_read_b128 v[8:11], v2\nds_read_b128 v[12:15], v2 offset:512\ns_waitcnt lgkmcnt(0)')
        for i in range(4): a(f'v_add_f32 v{8+i}, v{8+i}, v{12+i}')
        for i in range(4): a(f'v_add_f32_dpp v{8+i}, v{8+i}, v{8+i} row_ror:8 {DPPF}')
        for i in range(4): a(f'v_cvt_pk_bf16_f32 v{8+i}, v{8+i}, v{8+i}')
        def bc(t, i): a(f'v_and_b32_dpp v{16+4*(t&1)+i}, v{8+i}, v3 row_newbcast:{t} {DPPF}')
        for i in range(4): bc(0, i)
        for t in range(8):
            op = 16 + 4*(t & 1)
            for p in range(4):
                r = W + 16*t + 4*p
                a(f'v_mfma_f32_16x16x32_bf16 v[{24+4*p}:{27+4*p}], v[{op}:{op+3}], v[{r}:{r+3}], ' + ('0' if t == 0 else f'v[{24+4*p}:{27+4*p}]'))
                if t < 7 and p < 2: bc(t+1, 2*p); bc(t+1, 2*p+1)
        for p in range(4): a(f'v_cvt_pk_bf16_f32 v{8+p}, v{24+4*p}, v{25+4*p}')
        a('''s_mov_b64 exec, 0xffff
        buffer_store_dwordx4 v[8:11], v4, s[40:43], s48 offen sc1
        s_mov_b64 exec, -1''')
        self.stamp(10)
        a('s_waitcnt vmcnt(0)')
        self.sig(C_OUT, 6)

    def epilogue(self):
        a = self.a
        a('L_end:')
        if 'leak' in self.o:
            g, k = divmod(self.o['leak'], 100)
            self.stamp(15)
            a(f'''s_waitcnt lgkmcnt(0)
            s_lshr_b32 s38, s32, 2
            s_cmp_lg_u32 s38, {g}
            s_cbranch_scc1 L_exit
            s_cmp_eq_u32 s{64+2*k}, 0
            s_cbranch_scc1 L_exit
            s_add_u32 s39, s{64+2*k}, 6000
            L_lk:
            s_memrealtime s[56:57]
            s_sub_u32 s3, s3, 1
            s_cbranch_scc1 L_exit
            s_waitcnt lgkmcnt(0)
            s_sub_u32 s38, s56, s39
            s_cmp_lt_i32 s38, 0
            s_cbranch_scc1 L_lk''')
        if self.dbg:
            self.stamp(15)
            a('s_waitcnt lgkmcnt(0)\ns_mov_b64 exec, -1')
            for k in range(16): a(f'v_mov_b32 v{8+k}, s{64+2*k}')
            a(f'''v_mov_b32 v22, s3
            s_mul_i32 s38, s2, 12
            s_add_u32 s38, s38, s32
            s_lshl_b32 s38, s38, 6
            s_add_u32 s38, s38, {STMP}
            v_mov_b32 v2, 0
            s_mov_b64 exec, 1''')
            for k in range(4): a(f'buffer_store_dwordx4 v[{8+4*k}:{11+4*k}], v2, s[40:43], s38 offen offset:{16*k}')
        a('L_exit:\ns_endpgm\nL_codeend:')

    def build(self):
        a = self.a; K = NAME + '_kernel'
        kstart(a, K)
        n0 = len(a.L)
        if self.dbg or 'leak' in self.o:
            for k in range(1, 16): a(f's_mov_b32 s{64+2*k}, 0')
        self.prologue(); self.groupA(); self.groupB(); self.groupC(); self.epilogue()
        body, nn = hazard.fix(a.L[n0:])
        a.L[n0:] = body
        kdesc(a, K, 168, 168)
        h = Asm()
        header(h, [(None, 256, 768, 163840)])
        return h.text() + a.text(), nn

if __name__ == '__main__':
    out = sys.argv[1]
    dbg = 'dbg' in sys.argv[2:]
    opt = {}
    for x in sys.argv[2:]:
        if '=' in x:
            k, v = x.split('=')
            opt[k] = int(v) if v.lstrip('-').isdigit() else (' ' + v if v else '')
    t, nn = G(dbg, opt).build()
    open(out, 'w').write(t)
    print('written', out, 'nops inserted', nn)
```

```python
import sys, math
from asmlib import *
import hazard

HBUF = 0x0
MOD  = 0x2000
QL   = 0x10000
STAT = 0x50000
OUTP = 0x90000
YP   = 0xD0000
PART = 0x200000
STMP = 0xA00000
WSSZ = 0x1000000
KV   = 0
QR   = 131072
QROW = 1008
S1W  = KV + 98304
WUK  = KV + 81920
SYNC = QR + QROW*24 + 992
def pad(i, w): return QROW*i + 4*w
MAXO = QR + 32256 - SYNC
C_S1, C_S2, C_LATE, C_WQ = pad(0,0), pad(0,1), pad(0,2), pad(0,3)
C_Q, C_ISS, C_P, C_PV = pad(1,0), pad(1,1), pad(1,2), pad(1,3)
F_CL = pad(2,0)
C_CTX, C_OUT, C_FFW, C_QP = pad(3,0), pad(3,1), pad(3,2), pad(3,3)
C_U = pad(4,0)
LN1, LN2 = pad(5,0), pad(6,0)
S1P = QR; S2P = QR
PB = QR; LB = QR + 8192; COEF = QR + 8704; CLB = QR + 9728; CTXB = QR + 13824; H2B = QR + 15872; UB = QR + 16896
MOP = KV + 65536
SC = 128**-0.5 * math.log2(math.e)
import struct
def f32(x): return '0x%08x' % struct.unpack('<I', struct.pack('<f', x))[0]
DPPF = 'row_mask:0xf bank_mask:0xf'

class G:
    def __init__(self, dbg=False, opt=None):
        self.a = Asm(); self.dbg = dbg; self.n = 0
        self.o = dict(nb=32, thr=3, nt_w='', nt_kv=' nt', thr_t=3, pf=True)
        if opt: self.o.update(opt)
    def lab(self, p):
        self.n += 1; return f'L_{p}{self.n}'
    def stamp(self, k):
        if self.dbg or 'leak' in self.o: self.a(f's_memrealtime s[{64+2*k}:{65+2*k}]')
    def sig(self, off, tmp):
        self.a(f'''v_mov_b32 v{tmp}, 1
        s_mov_b64 exec, 1
        ds_add_u32 v0, v{tmp} offset:{off}
        s_mov_b64 exec, -1''')
    def wait(self, off, target, tmp, sleep=0, addr='v0'):
        L = self.lab('w')
        self.a(f'{L}:')
        if sleep: self.a(f's_sleep {sleep}')
        self.a(f'''ds_read_b32 v{tmp}, {addr} offset:{off}
        s_sub_u32 s3, s3, 1
        s_cbranch_scc1 L_end
        s_waitcnt lgkmcnt(0)
        v_cmp_gt_u32 vcc, {target}, v{tmp}
        s_cbranch_vccnz {L}''')
    def srd(self, s, p, size):
        self.a(f'''s_mov_b32 s{s}, s{p}
        s_mov_b32 s{s+1}, s{p+1}
        s_mov_b32 s{s+2}, {size}
        s_mov_b32 s{s+3}, 0x20000''')
    def check(self, r0, n, tmp):
        a = self.a
        a(f'v_max3_u32 v{tmp}, v{r0}, v{r0+1}, v{r0+2}') if n >= 3 else a(f'v_max_u32 v{tmp}, v{r0}, v{r0+n-1}')
        i = 3
        while i < n:
            if i + 1 < n: a(f'v_max3_u32 v{tmp}, v{tmp}, v{r0+i}, v{r0+i+1}'); i += 2
            else: a(f'v_max_u32 v{tmp}, v{tmp}, v{r0+i}'); i += 1
        a(f'v_cmp_eq_u32 vcc, -1, v{tmp}')
    def budget(self):
        self.a('s_sub_u32 s3, s3, 1\ns_cbranch_scc1 L_end')
    def swaps(self, base):
        for i in range(4):
            for p in range(i+1, 4):
                self.a(f'v_swap_b32 v{base+4*i+p}, v{base+4*p+i}')
    def red32(self, op, r, t):
        a = self.a
        for m in ('quad_perm:[1,0,3,2]', 'quad_perm:[2,3,0,1]', 'row_half_mirror', 'row_mirror'):
            a(f'{op}_dpp v{r}, v{r}, v{r} {m} {DPPF}')
        a(f'v_mov_b32 v{t}, v{r}')
        a(f'v_permlane16_swap_b32 v{r}, v{t}')
        a(f'{op} v{r}, v{r}, v{t}')
    def slotmasks(self, m, lane, t):
        a = self.a
        a(f'''v_and_b32 v{t}, 1, v{lane}
        v_lshlrev_b32 v{t}, 4, v{t}
        s_mov_b32 s38, 0xffff
        v_lshlrev_b32 v{t}, v{t}, s38
        v_bfe_u32 v{t+1}, v{lane}, 1, 2''')
        for i in range(4):
            a(f'v_cmp_eq_u32 vcc, {i}, v{t+1}')
            a(f'v_cndmask_b32 v{m+i}, 0, v{t}, vcc')
    def silu_load(self, raw, t, srd):
        a = self.a
        a(f'''v_and_b32 v{t}, 7, v1
        v_lshlrev_b32 v{t}, 10, v{t}
        v_bfe_u32 v{t+1}, v1, 3, 1
        v_lshl_add_u32 v{t}, v{t+1}, 7, v{t}
        v_lshrrev_b32 v{t+1}, 4, v1
        v_lshl_add_u32 v{t}, v{t+1}, 4, v{t}
        s_lshl_b32 s38, s33, 8
        buffer_load_dwordx4 v[{raw}:{raw+3}], v{t}, s[{srd}:{srd+3}], s38 offen
        buffer_load_dwordx4 v[{raw+4}:{raw+7}], v{t}, s[{srd}:{srd+3}], s38 offen offset:64''')
    def silu_calc(self, raw, t):
        a = self.a
        a(f's_mov_b32 s38, {f32(-math.log2(math.e))}')
        for i in range(8):
            a(f'''v_lshlrev_b32 v{t}, 16, v{raw+i}
            v_and_b32 v{t+1}, 0xffff0000, v{raw+i}
            v_mul_f32 v{t+2}, s38, v{t}
            v_mul_f32 v{t+3}, s38, v{t+1}
            v_exp_f32 v{t+2}, v{t+2}
            v_exp_f32 v{t+3}, v{t+3}
            v_add_f32 v{t+2}, 1.0, v{t+2}
            v_add_f32 v{t+3}, 1.0, v{t+3}
            v_rcp_f32 v{t+2}, v{t+2}
            v_rcp_f32 v{t+3}, v{t+3}
            v_mul_f32 v{t}, v{t}, v{t+2}
            v_mul_f32 v{t+1}, v{t+1}, v{t+3}
            v_cvt_pk_bf16_f32 v{raw+i}, v{t}, v{t+1}''')
        for i in range(8):
            a(f'v_mov_b32_dpp v{raw+8+i}, v{raw+i} row_ror:8 {DPPF}')

    def prologue(self):
        a = self.a
        self.stamp(0)
        a(f'''
        s_cmp_ge_u32 s2, 256
        s_cbranch_scc1 L_exit
        s_load_dwordx16 s[4:19], s[0:1], 0
        s_load_dwordx8 s[20:27], s[0:1], 64
        s_load_dwordx4 s[28:31], s[0:1], 96
        v_lshrrev_b32 v2, 6, v0
        v_and_b32 v1, 63, v0
        v_readfirstlane_b32 s32, v2
        s_and_b32 s36, s2, 7
        s_lshr_b32 s37, s2, 3
        s_and_b32 s34, s37, 7
        s_lshr_b32 s35, s37, 3
        s_lshl_b32 s35, s35, 3
        s_add_u32 s35, s35, s36
        s_and_b32 s33, s32, 3
        s_mov_b32 s3, 0x400000
        v_mov_b32 v0, {SYNC}
        ''')
        if self.o['pf']:
            a(f'''
            s_getpc_b64 s[52:53]
            L_pc:
            s_mul_i32 s38, s37, 12
            s_add_u32 s38, s38, s32
            s_lshl_b32 s38, s38, 7
            s_cmp_ge_u32 s38, L_codeend-L_pc
            s_cbranch_scc1 L_nopf
            v_mov_b32 v2, s38
            s_mov_b64 exec, 1
            global_load_dword v167, v2, s[52:53]
            s_mov_b64 exec, -1
            L_nopf:
            ''')
        a(f'''
        s_lshl_b32 s54, s34, 5
        s_add_u32 s54, s54, s35
        s_lshl_b32 s54, s54, 10      ; (b*32+j)*1024
        s_lshl_b32 s55, s36, 2
        s_add_u32 s55, s55, s37
        s_waitcnt lgkmcnt(0)
        ''')
        self.srd(40, 30, WSSZ)
        a('''
        s_cmp_ge_u32 s32, 8
        s_cbranch_scc1 L_C
        s_cmp_ge_u32 s32, 4
        s_cbranch_scc1 L_B
        ''')

    def groupA(self):
        a = self.a; o = self.o
        a('L_A:')
        a(f'''
        v_mov_b32 v8, -1
        v_mov_b32 v9, -1
        v_mov_b32 v10, -1
        v_mov_b32 v11, -1
        v_lshlrev_b32 v2, 4, v1
        s_cmp_lg_u32 s33, 0
        s_cbranch_scc1 L_A_i1
        v_cmp_lt_u32 vcc, 4, v1
        v_mul_u32_u24 v3, {QROW}, v1
        v_cndmask_b32 v4, 0, v8, vcc
        v_add_u32 v3, v3, v0
        v_mov_b32 v5, v4
        v_mov_b32 v6, v4
        v_mov_b32 v7, v4
        v_add_u32 v12, v2, v0
        s_mov_b64 exec, 0xff
        ds_write_b128 v3, v[4:7]
        s_mov_b32 exec_lo, -1
        ds_write_b128 v12, v[8:11] offset:{MAXO}
        s_mov_b64 exec, -1
        L_A_i1:
        s_cmp_lg_u32 s33, 1
        s_cbranch_scc1 L_A_i2
        s_cmp_ge_u32 s2, 32
        s_cbranch_scc1 L_A_i2
        s_lshl_b32 s38, s55, 13
        s_add_u32 s38, s38, {QL}
        s_add_u32 s39, s38, 4096
        ''')
        for i in range(4): a(f'buffer_store_dwordx4 v[8:11], v2, s[40:43], s38 offen offset:{1024*i} sc1')
        for i in range(4): a(f'buffer_store_dwordx4 v[8:11], v2, s[40:43], s39 offen offset:{1024*i} sc1')
        a(f'''
        s_lshl_b32 s38, s55, 8
        s_mov_b64 exec, 0xffff
        buffer_store_dwordx4 v[8:11], v2, s[40:43], s38 offen sc1
        s_lshl_b32 s38, s55, 3
        v_mov_b32 v3, s38
        s_mov_b64 exec, 1
        s_waitcnt vmcnt(0)
        global_store_dword v3, v8, s[28:29] sc1
        s_mov_b64 exec, -1
        L_A_i2:
        ''')
        self.srd(44, 6, 33554432)
        a(f'''
        v_lshrrev_b32 v4, 3, v1            ; rho
        v_bfe_u32 v5, v4, 1, 1
        v_lshlrev_b32 v5, 2, v5
        v_bfe_u32 v6, v4, 2, 1
        v_or_b32 v5, v5, v6
        v_and_b32 v6, 7, v1
        v_xor_b32 v5, v5, v6
        v_lshlrev_b32 v5, 4, v5
        v_lshl_add_u32 v2, v4, 10, v5      ; voffE
        v_xor_b32 v3, 32, v2               ; voffO
        s_lshl_b32 s48, s54, 7             ; (b*4096+j*128)*1024
        s_lshl_b32 s38, s33, 15
        s_add_u32 s48, s48, s38
        s_lshl_b32 s49, s33, 12
        s_waitcnt lgkmcnt(0)
        s_barrier
        ''')
        self.wait(C_WQ, 4, 8, sleep=1)
        self.stamp(1)
        a(f'''
        s_mov_b32 s50, 0
        L_A_dma:
        s_cmp_lg_u32 s50, 5
        s_cbranch_scc1 L_A_dma1
        ''')
        self.wait(C_LATE, 4, 8)
        a('L_A_dma1:')
        for kb in range(4):
            a(f'''s_add_u32 m0, s49, {kb*1024}
            s_add_u32 s38, s48, {kb*8192}
            buffer_load_dwordx4 v{2+(kb&1)}, s[44:47], s38 offen{o['nt_kv']} lds
            s_waitcnt vmcnt({o['thr']})''')
        a(f'''
        s_add_u32 s49, s49, 16384
        s_add_u32 s48, s48, 128
        s_add_u32 s50, s50, 1
        s_cmp_lt_u32 s50, 8
        s_cbranch_scc1 L_A_dma
        ''')
        self.sig(C_ISS, 8)
        self.stamp(2)
        a(f'''
        v_and_b32 v9, 31, v1
        v_lshrrev_b32 v10, 5, v1           ; h
        v_bfe_u32 v4, v9, 1, 1
        v_lshlrev_b32 v4, 2, v4
        v_bfe_u32 v5, v9, 2, 2
        v_or_b32 v4, v4, v5                ; f
        v_xor_b32 v4, v4, v10
        v_lshlrev_b32 v4, 4, v4
        v_lshl_add_u32 v4, v9, 7, v4
        s_lshl_b32 s38, s33, 12
        v_add_u32 v4, s38, v4
        v_xor_b32 v5, 32, v4
        v_xor_b32 v6, 64, v4
        v_xor_b32 v7, 0x60, v4
        v_mul_u32_u24 v8, {QROW}, v9
        v_lshl_add_u32 v8, v10, 4, v8
        v_add_u32 v8, {QR}, v8
        v_lshlrev_b32 v11, 10, v9
        v_lshl_add_u32 v11, v10, 4, v11
        s_lshl_b32 s38, s34, 15
        s_add_u32 s38, s38, {QL}
        ''')
        self.wait(C_Q, 4, 16)
        self.stamp(3)
        a('buffer_load_dwordx4 v[12:15], v11, s[40:43], s38 offen offset:992 sc1')
        D = 4
        def rd(t):
            cb = t >> 2
            if t == 16:
                for u in range(4): a(f'v_add_u32 v{4+u}, 0x10000, v{4+u}')
            if t == 28: a('s_waitcnt vmcnt(0)')
            a(f'ds_read_b128 v[{32+4*(t%D)}:{35+4*(t%D)}], v{4+(t&3)} offset:{(cb&3)*16384}')
            if t < 31: a(f'ds_read_b128 v[{48+4*(t%D)}:{51+4*(t%D)}], v8 offset:{32*t}')
        for t in range(D-1): rd(t)
        for t in range(32):
            if t + D - 1 < 32: rd(t + D - 1)
            out = sum((2 if u < 31 else 1) for u in range(t+1, min(t+D, 32)))
            a(f's_waitcnt lgkmcnt({out})')
            q = f'v[{48+4*(t%D)}:{51+4*(t%D)}]' if t < 31 else 'v[12:15]'
            a(f'v_mfma_f32_32x32x16_bf16 v[16:31], v[{32+4*(t%D)}:{35+4*(t%D)}], {q}, ' + ('0' if t == 0 else 'v[16:31]'))
        a(f'''
        v_bfe_u32 v32, v1, 2, 2            ; r'
        v_lshl_add_u32 v33, v10, 2, v32    ; rho = 4h + r'
        v_lshrrev_b32 v32, 1, v32
        v_lshl_or_b32 v32, v32, 2, v10     ; f (nu=0)
        v_bfe_u32 v34, v1, 4, 1
        v_bfe_u32 v35, v1, 1, 1
        v_lshl_or_b32 v34, v34, 1, v35
        v_xor_b32 v32, v32, v34
        v_lshlrev_b32 v32, 4, v32
        v_lshl_add_u32 v32, v33, 7, v32
        v_and_b32 v33, 1, v1
        v_lshl_add_u32 v32, v33, 3, v32
        s_mul_i32 s38, s33, {32768+4096}
        v_add_u32 v4, s38, v32
        v_xor_b32 v5, {1024+32}, v4
        v_xor_b32 v6, 64, v4
        v_xor_b32 v7, {1024+32+64}, v4
        v_lshl_add_u32 v11, v9, 4, v0
        s_lshl_b32 s38, s33, 2
        v_add_u32 v12, s38, v11
        ''')
        self.stamp(4)
        a('v_max3_f32 v13, v16, v17, v18')
        for r in range(19, 31, 2): a(f'v_max3_f32 v13, v13, v{r}, v{r+1}')
        a(f'''v_max_f32 v13, v13, v31
        v_mov_b32 v14, v13
        v_permlane32_swap_b32 v13, v14
        v_max_f32 v13, v13, v14
        ds_write_b32 v12, v13 offset:{MAXO}
        L_A_mx:
        ds_read_b128 v[32:35], v11 offset:{MAXO}''')
        self.budget()
        a('s_waitcnt lgkmcnt(0)')
        self.check(32, 4, 36)
        a(f'''s_cbranch_vccnz L_A_mx
        v_max3_f32 v13, v32, v33, v34
        v_max_f32 v13, v13, v35''')
        def rv(i):
            kt, u, ct = i >> 3, (i >> 2) & 1, i & 3
            if i and i % 8 == 0:
                x = (kt ^ (kt-1)) * 4096
                for r in range(4): a(f'v_xor_b32 v{4+r}, {x}, v{4+r}')
            B = 32 + 4*(i % 8)
            off = (ct >> 1)*16384 + u*2048
            a(f'ds_read_b64_tr_b16 v[{B}:{B+1}], v{4+2*(ct&1)} offset:{off}')
            a(f'ds_read_b64_tr_b16 v[{B+2}:{B+3}], v{5+2*(ct&1)} offset:{off}')
        DV = 5
        for i in range(DV-1): rv(i)
        for r in range(16): a(f'v_sub_f32 v{16+r}, v{16+r}, v13')
        for r in range(16): a(f'v_exp_f32 v{16+r}, v{16+r}')
        for r in range(8): a(f'v_cvt_pk_bf16_f32 v{128+r}, v{16+2*r}, v{17+2*r}')
        a(f'''v_lshlrev_b32 v8, 4, v1
        s_lshl_b32 s38, s33, 11
        s_add_u32 s38, s38, {PB}
        v_add_u32 v8, s38, v8
        ds_write_b128 v8, v[128:131]
        ds_write_b128 v8, v[132:135] offset:1024''')
        for k in (8, 4, 2, 1):
            for r in range(k): a(f'v_add_f32 v{16+r}, v{16+r}, v{16+k+r}')
        a(f'''v_mov_b32 v14, v16
        v_permlane32_swap_b32 v16, v14
        v_add_f32 v16, v16, v14
        v_add_u32 v12, {LB - SYNC}, v12
        ds_write_b32 v12, v16''')
        self.sig(C_P, 14)
        self.stamp(5)
        for i in range(32):
            kt, u, ct = i >> 3, (i >> 2) & 1, i & 3
            if i == 4:
                self.wait(C_P, 4, 14)
                for k in range(1, 4):
                    a(f'v_xor_b32 v15, {k*2048}, v8')
                    a(f'ds_read_b128 v[{128+8*k}:{131+8*k}], v15')
                    a(f'ds_read_b128 v[{132+8*k}:{135+8*k}], v15 offset:1024')
                a(f'v_add_u32 v11, {LB - SYNC}, v11')
                a('ds_read_b128 v[16:19], v11')
            if i + DV - 1 < 32: rv(i + DV - 1)
            out = 2*(min(i+DV, 32) - (i+1))
            if i < 4: out = min(out, 2*(i+1))
            if 4 <= i < 8: out = 15
            if out < 15: a(f's_waitcnt lgkmcnt({out})')
            B = 32 + 4*(i % 8); P = 128 + 8*kt + 4*u; A = 64 + 16*ct
            a(f'v_mfma_f32_32x32x16_bf16 v[{A}:{A+15}], v[{P}:{P+3}], v[{B}:{B+3}], ' + ('0' if i < 4 else f'v[{A}:{A+15}]'))
        self.sig(C_PV, 14)
        self.stamp(6)
        a(f'''
        v_add_f32 v16, v16, v17
        v_add_f32 v18, v18, v19
        v_add_f32 v14, v16, v18            ; v13 = m, v14 = l
        v_bfe_u32 v2, v1, 4, 1
        v_lshl_add_u32 v2, v10, 2, v2
        v_lshlrev_b32 v2, 15, v2
        v_and_b32 v3, 15, v1
        v_lshl_add_u32 v2, v3, 4, v2
        s_lshl_b32 s48, s34, 20
        s_lshl_b32 s38, s35, 10
        s_add_u32 s48, s48, s38
        s_lshl_b32 s38, s33, 8
        s_add_u32 s48, s48, s38
        s_add_u32 s48, s48, {PART}
        ''')
        for k in range(8):
            r = 2*k; T = 128 + 4*k
            a(f'''v_cvt_pk_bf16_f32 v{T}, v{64+r}, v{80+r}
            v_cvt_pk_bf16_f32 v{T+1}, v{65+r}, v{81+r}
            v_cvt_pk_bf16_f32 v{T+2}, v{96+r}, v{112+r}
            v_cvt_pk_bf16_f32 v{T+3}, v{97+r}, v{113+r}
            s_add_u32 s38, s48, {((r & 3) + 8*(r >> 2)) << 15}
            v_permlane16_swap_b32 v{T}, v{T+1}
            v_permlane16_swap_b32 v{T+2}, v{T+3}
            buffer_store_dwordx4 v[{T}:{T+3}], v2, s[40:43], s38 offen sc1''')
        a(f'''
        v_mov_b32 v12, v13
        v_mov_b32 v13, v14
        v_lshlrev_b32 v4, 3, v9
        s_lshl_b32 s38, s33, 8
        s_add_u32 s49, s54, s38
        s_add_u32 s49, s49, {STAT}
        v_lshlrev_b32 v5, 10, v9
        s_lshl_b32 s50, s34, 15
        s_add_u32 s50, s50, s38
        s_lshl_b32 s39, s35, 3
        s_add_u32 s50, s50, s39
        s_add_u32 s50, s50, {STAT}
        v_lshrrev_b32 v6, 4, v1            ; g
        v_lshlrev_b32 v7, 13, v6
        v_lshl_add_u32 v7, v3, 4, v7
        s_lshl_b32 s51, s54, 5
        s_add_u32 s51, s51, s38
        s_add_u32 s51, s51, {PART}
        s_add_u32 s52, s51, 4096
        ''')
        self.slotmasks(20, 1, 16)
        a(f'''
        s_lshl_b32 s38, s33, 8
        s_add_u32 s38, s38, {COEF}
        v_lshl_add_u32 v24, v1, 2, s38
        v_bfe_u32 v16, v1, 3, 1
        v_lshlrev_b32 v16, 7, v16
        v_lshl_add_u32 v16, v6, 5, v16
        v_add_u32 v25, s38, v16
        v_bfe_u32 v16, v1, 4, 1
        v_lshlrev_b32 v16, 4, v16
        v_lshl_add_u32 v16, v3, 5, v16
        v_lshl_add_u32 v16, v10, 3, v16    ; 4*pos
        s_lshr_b32 s38, s34, 1
        s_lshl_b32 s38, s38, 7
        s_and_b32 s39, s34, 1
        s_lshl_b32 s39, s39, 4
        s_or_b32 s38, s38, s39
        v_xor_b32 v16, s38, v16
        s_lshl_b32 s38, s33, 10
        s_add_u32 s38, s38, {CLB}
        v_add_u32 v26, s38, v16
        s_lshl_b32 s38, s33, 2
        v_add_u32 v27, s38, v0
        s_waitcnt vmcnt(0)
        s_mov_b32 exec_hi, 0
        buffer_store_dwordx2 v[12:13], v4, s[40:43], s49 offen sc1
        s_mov_b64 exec, -1
        ''')
        self.stamp(7)
        self.srd(44, 22, 8192)
        a('s_cmp_lt_u32 s35, 28\ns_cbranch_scc1 L_A_st')
        self.silu_load(128, 16, 44)
        a('L_A_st:')
        a('buffer_load_dwordx2 v[12:13], v5, s[40:43], s50 offen sc1')
        self.budget()
        a(f'''s_waitcnt vmcnt(0)
        v_cmp_eq_u32 vcc, -1, v13
        s_cbranch_vccnz L_A_st''')
        self.stamp(8)
        for t in range(8):
            a(f'buffer_load_dwordx4 v[{32+4*t}:{35+4*t}], v7, s[40:43], s{51+(t>>2)} offen offset:{(t&3)*1024} sc1')
        a('v_mov_b32 v14, v12')
        self.red32('v_max_f32', 14, 15)
        a(f'''v_sub_f32 v12, v12, v14
        v_exp_f32 v12, v12
        v_mul_f32 v14, v12, v13''')
        self.red32('v_add_f32', 14, 15)
        a(f'''v_rcp_f32 v14, v14
        v_cmp_gt_u32 vcc, 32, v1
        v_mul_f32 v12, v12, v14
        v_cvt_pk_bf16_f32 v13, v12, v12
        v_and_b32 v14, 0xffff0000, v13
        v_sub_f32 v12, v12, v14
        v_cvt_pk_bf16_f32 v12, v12, v12
        v_cndmask_b32 v12, v12, v13, vcc
        ds_write_b32 v24, v12
        ds_read_b128 v[12:15], v25
        ds_read_b128 v[16:19], v25 offset:16
        s_waitcnt lgkmcnt(0)''')
        for t in range(8):
            for i in range(4): a(f'v_and_b32 v{64+4*t+i}, v{12+t}, v{20+i}')
        for t in range(8):
            a(f's_waitcnt vmcnt({7-t})')
            a(f'v_mfma_f32_16x16x32_bf16 v[28:31], v[{64+4*t}:{67+4*t}], v[{32+4*t}:{35+4*t}], ' + ('0' if t == 0 else 'v[28:31]'))
        a(f'''v_mov_b32 v16, 1
        v_permlane32_swap_b32 v28, v30
        v_permlane32_swap_b32 v29, v31
        v_add_f32 v28, v28, v30
        v_add_f32 v29, v29, v31
        v_cvt_pk_bf16_f32 v12, v28, 0
        v_cvt_pk_bf16_f32 v13, v29, 0
        v_cvt_pk_bf16_f32 v14, 0, v28
        v_cvt_pk_bf16_f32 v15, 0, v29
        ds_write2_b64 v26, v[12:13], v[14:15] offset0:0 offset1:64
        ds_write_b32 v27, v16 offset:{F_CL}''')
        self.stamp(9)
        a(f'''
        s_mov_b32 s38, 0x3f803f80
        v_and_b32 v20, s38, v20
        v_and_b32 v21, s38, v21
        v_and_b32 v22, s38, v22
        v_and_b32 v23, s38, v23
        v_bfe_u32 v12, v1, 2, 2            ; r'
        v_lshl_add_u32 v13, v6, 3, v12     ; 8g + r'
        v_lshrrev_b32 v14, 1, v12
        v_and_b32 v15, 1, v6
        v_lshl_or_b32 v14, v15, 1, v14     ; f1
        v_lshlrev_b32 v14, 5, v14
        v_lshl_add_u32 v14, v13, 7, v14
        v_and_b32 v16, 3, v1
        v_lshl_add_u32 v14, v16, 3, v14
        s_lshl_b32 s38, s33, 14
        v_add_u32 v24, s38, v14
        v_xor_b32 v25, 32, v24
        v_xor_b32 v26, 64, v24
        v_xor_b32 v27, 0x60, v24
        v_lshl_or_b32 v14, v15, 2, v12     ; f2
        v_lshlrev_b32 v14, 5, v14
        v_lshl_add_u32 v14, v13, 10, v14
        v_lshl_add_u32 v14, v16, 3, v14
        s_lshl_b32 s38, s33, 8
        s_add_u32 s38, s38, 65536
        v_add_u32 v2, s38, v14
        ''')
        a('s_cmp_lt_u32 s35, 28\ns_cbranch_scc1 L_A_w1')
        self.silu_calc(128, 12)
        a('L_A_w1:')
        self.wait(C_FFW, 8, 12, sleep=1)
        for s in range(4):
            for T in range(4):
                B = 64 + 16*s + 4*T
                a(f'ds_read_b64_tr_b16 v[{B}:{B+1}], v{24+T} offset:{s*4096}')
                a(f'ds_read_b64_tr_b16 v[{B+2}:{B+3}], v{24+T} offset:{s*4096+512}')
            a('s_waitcnt lgkmcnt(0)')
        a('s_cmp_lt_u32 s35, 28\ns_cbranch_scc1 L_A_F')
        for s in range(4):
            for T in range(4):
                B = 64 + 16*s + 4*T
                a(f'v_mfma_f32_16x16x32_bf16 v[{32+4*T}:{35+4*T}], v[{B}:{B+3}], v[{128+4*s}:{131+4*s}], ' + ('0' if s == 0 else f'v[{32+4*T}:{35+4*T}]'))
        a(f'''s_lshl_b32 s38, s33, 12
        s_add_u32 s38, s38, {MOP}
        v_lshl_add_u32 v12, v1, 4, s38''')
        for T in range(4): a(f'ds_write_b128 v12, v[{32+4*T}:{35+4*T}] offset:{T*1024}')
        self.sig(C_U, 13)
        a(f'''s_sub_u32 s38, s35, 28
        s_cmp_lg_u32 s38, s33
        s_cbranch_scc1 L_end
        v_and_b32 v12, 0x37, v1
        v_lshlrev_b32 v12, 4, v12
        v_bfe_u32 v13, v1, 3, 1
        v_lshl_add_u32 v12, v13, 11, v12
        v_add_u32 v12, {MOP}, v12
        v_and_b32 v14, 7, v1
        v_lshlrev_b32 v14, 10, v14
        v_lshl_add_u32 v14, v13, 6, v14
        v_lshl_add_u32 v14, v6, 4, v14
        s_lshl_b32 s38, s33, 13
        s_lshl_b32 s39, s34, 7
        s_add_u32 s38, s38, s39
        s_add_u32 s38, s38, {MOD}''')
        self.wait(C_U, 4, 13)
        for w in range(4):
            for T in range(2): a(f'ds_read_b128 v[{32+8*w+4*T}:{35+8*w+4*T}], v12 offset:{w*4096+T*1024}')
        a('s_waitcnt lgkmcnt(0)')
        for r in range(8):
            a(f'v_add_f32 v{32+r}, v{32+r}, v{40+r}\nv_add_f32 v{48+r}, v{48+r}, v{56+r}')
        for r in range(8): a(f'v_add_f32 v{32+r}, v{32+r}, v{48+r}')
        for r in range(4): a(f'v_cvt_pk_bf16_f32 v{32+r}, v{32+2*r}, v{33+2*r}')
        a('buffer_store_dwordx4 v[32:35], v14, s[40:43], s38 offen sc1')
        a('L_A_F:')
        self.srd(44, 4, 8192)
        a(f'''
        v_and_b32 v12, 1, v6
        v_lshlrev_b32 v13, 3, v12
        v_lshl_add_u32 v13, v3, 4, v13
        s_lshl_b32 s38, s34, 10
        s_lshl_b32 s39, s33, 8
        s_add_u32 s48, s38, s39
        buffer_load_dwordx2 v[128:129], v13, s[44:47], s48 offen
        v_and_b32 v14, 12, v3
        v_lshlrev_b32 v14, 4, v14          ; 128*blk + 64*(T>>1)
        v_and_b32 v15, 1, v3
        v_lshl_add_u32 v14, v15, 5, v14
        v_lshl_add_u32 v14, v12, 4, v14
        v_bfe_u32 v15, v3, 1, 1
        v_lshl_add_u32 v14, v15, 3, v14
        s_add_u32 s49, s48, {MOD}
        s_add_u32 s50, s49, 8192
        s_add_u32 s51, s49, 16384
        s_add_u32 s52, s49, 24576
        L_A_md:
        buffer_load_dwordx2 v[130:131], v14, s[40:43], s49 offen sc1
        buffer_load_dwordx2 v[132:133], v14, s[40:43], s50 offen sc1
        buffer_load_dwordx2 v[134:135], v14, s[40:43], s51 offen sc1
        buffer_load_dwordx2 v[136:137], v14, s[40:43], s52 offen sc1''')
        self.budget()
        a('s_waitcnt vmcnt(0)')
        self.check(130, 8, 15)
        a('s_cbranch_vccnz L_A_md')
        for k in range(5):
            for i in range(2):
                a(f'v_lshlrev_b32 v{140+4*k+2*i}, 16, v{128+2*k+i}\nv_and_b32 v{141+4*k+2*i}, 0xffff0000, v{128+2*k+i}')
        for i in range(4): a(f'v_add_f32 v{152+i}, 1.0, v{152+i}')
        a(f'''
        s_lshl_b32 s51, s34, 15
        s_add_u32 s51, s51, s39
        s_add_u32 s53, s51, {YP}
        s_add_u32 s51, s51, {OUTP}
        s_add_u32 s52, s51, 4096
        s_add_u32 s38, s39, {H2B}
        v_add_u32 v24, s38, v13            ; h2 write
        v_lshl_add_u32 v25, v6, 4, s38     ; h2 read
        v_mul_u32_u24 v26, {QROW}, v10
        s_lshl_b32 s38, s33, 2
        v_add3_u32 v26, v26, v0, s38
        s_add_u32 s38, s39, {UB}
        v_lshl_add_u32 v27, v6, 4, s38     ; u write
        v_and_b32 v12, 3, v1
        v_lshlrev_b32 v12, 8, v12
        v_bfe_u32 v15, v1, 3, 1
        v_lshl_add_u32 v12, v15, 7, v12
        v_bfe_u32 v15, v1, 2, 1
        v_lshl_add_u32 v12, v15, 4, v12
        v_lshl_add_u32 v12, v6, 5, v12
        v_add_u32 v4, {UB}, v12            ; u read
        v_lshlrev_b32 v5, 4, v3
        ''')
        self.wait(C_OUT, 4, 12)
        self.stamp(10)
        a('L_A_h4:')
        for t in range(8):
            a(f'buffer_load_dwordx4 v[{32+4*t}:{35+4*t}], v7, s[40:43], s{51+(t>>2)} offen offset:{(t&3)*1024} sc1')
        self.budget()
        for t in range(8):
            a(f's_waitcnt vmcnt({7-t})')
            a(f'v_mfma_f32_16x16x32_bf16 v[28:31], v[20:23], v[{32+4*t}:{35+4*t}], ' + ('0' if t == 0 else 'v[28:31]'))
            r = 32 + 4*t
            if t == 0: a(f'v_max3_u32 v12, v{r}, v{r+1}, v{r+2}\nv_max_u32 v12, v12, v{r+3}')
            else: a(f'v_max3_u32 v12, v12, v{r}, v{r+1}\nv_max3_u32 v12, v12, v{r+2}, v{r+3}')
        a('v_cmp_eq_u32 vcc, -1, v12\ns_cbranch_vccnz L_A_h4')
        self.stamp(11)
        for i in range(4): a(f'v_fma_f32 v{28+i}, v{28+i}, v{144+i}, v{140+i}')
        a('s_cmp_ge_u32 s35, 28\ns_cbranch_scc1 L_A_fin')
        a(f'''
        v_add_f32 v12, v28, v29
        v_mul_f32 v13, v28, v28
        v_add_f32 v14, v30, v31
        v_fmac_f32 v13, v29, v29
        v_cmp_gt_u32 vcc, 32, v1
        v_fmac_f32 v13, v30, v30
        v_add_f32 v12, v12, v14
        v_fmac_f32 v13, v31, v31
        v_cndmask_b32 v12, v13, v12, vcc''')
        self.red32('v_add_f32', 12, 13)
        a(f'''ds_write_b32 v26, v12 offset:{LN1}
        L_A_ln:
        ds_read_b128 v[12:15], v0 offset:{LN1}
        ds_read_b128 v[16:19], v0 offset:{LN2}''')
        self.budget()
        a('s_waitcnt lgkmcnt(0)')
        self.check(12, 8, 32)
        a(f'''s_cbranch_vccnz L_A_ln
        v_add_f32 v12, v12, v13
        v_add_f32 v16, v16, v17
        v_add_f32 v14, v14, v15
        v_add_f32 v18, v18, v19
        s_mov_b32 s38, {f32(1/512)}
        v_add_f32 v12, v12, v14
        v_add_f32 v16, v16, v18
        v_mul_f32 v12, s38, v12
        v_mul_f32 v16, s38, v16
        v_fma_f32 v16, -v12, v12, v16
        v_max_f32 v16, 0, v16
        v_add_f32 v16, {f32(1e-5)}, v16
        v_rsq_f32 v16, v16''')
        for i in range(4): a(f'v_sub_f32 v{28+i}, v{28+i}, v12')
        for i in range(4): a(f'v_mul_f32 v{152+i}, v{152+i}, v16')
        for i in range(4): a(f'v_fma_f32 v{28+i}, v{28+i}, v{152+i}, v{148+i}')
        a(f'''v_cvt_pk_bf16_f32 v28, v28, v29
        v_cvt_pk_bf16_f32 v29, v30, v31
        ds_write_b64 v24, v[28:29]''')
        for s in range(4): a(f'ds_read_b128 v[{128+4*s}:{131+4*s}], v25 offset:{64*s}')
        for T in range(1, 8): a(f'v_xor_b32 v{12+T}, {32*T}, v2')
        for s in range(4):
            a(f's_waitcnt lgkmcnt({3-s})')
            for T in range(4):
                B = 64 + 16*s + 4*T
                a(f'v_mfma_f32_16x16x32_bf16 v[{32+4*T}:{35+4*T}], v[{B}:{B+3}], v[{128+4*s}:{131+4*s}], ' + ('0' if s == 0 else f'v[{32+4*T}:{35+4*T}]'))
        def w2rd(s, T):
            B = 64 + 32*s + 4*T; ad = 2 if T == 0 else 12 + T
            a(f'ds_read_b64_tr_b16 v[{B}:{B+1}], v{ad} offset:{s*32768}')
            a(f'ds_read_b64_tr_b16 v[{B+2}:{B+3}], v{ad} offset:{s*32768+4096}')
        for T in range(4): w2rd(0, T)
        a('s_mov_b32 s38, 0x00010001\ns_mov_b32 s39, 0x00010001\ns_mov_b64 exec, s[38:39]')
        for T in range(4): a(f'ds_write_b128 v27, v[{32+4*T}:{35+4*T}] offset:{64*T}')
        a('s_mov_b64 exec, -1')
        self.sig(C_U, 12)
        a('s_waitcnt lgkmcnt(6)')
        for T in range(4, 8): w2rd(0, T)
        a('s_waitcnt lgkmcnt(4)')
        for T in range(4): w2rd(1, T)
        a('s_waitcnt lgkmcnt(4)')
        for T in range(4, 8): w2rd(1, T)
        self.wait(C_U, 4, 12)
        a('ds_read_b128 v[28:31], v4\ns_waitcnt lgkmcnt(0)')
        for m in ('quad_perm:[1,0,3,2]', 'quad_perm:[2,3,0,1]'):
            for i in range(4): a(f'v_add_f32_dpp v{28+i}, v{28+i}, v{28+i} {m} {DPPF}')
        for i in range(4): a(f'v_max_f32 v{28+i}, 0, v{28+i}')
        a('v_cvt_pk_bf16_f32 v28, v28, v29\nv_cvt_pk_bf16_f32 v29, v30, v31')
        for k in range(4):
            for i in range(2): a(f'v_mov_b32_dpp v{128+2*k+i}, v{28+i} row_newbcast:{4*k} {DPPF}')
        for s in range(2):
            for T in range(8):
                B = 64 + 32*s + 4*T
                a(f'v_mfma_f32_16x16x32_bf16 v[{32+4*T}:{35+4*T}], v[{128+4*s}:{131+4*s}], v[{B}:{B+3}], ' + ('0' if s == 0 else f'v[{32+4*T}:{35+4*T}]'))
        a(f's_lshl_b32 s38, s35, 10\ns_add_u32 s38, s38, s53')
        for k in range(4): a(f'v_cvt_pk_bf16_f32 v{28+k}, v{32+8*k}, v{36+8*k}')
        a(f'''s_mov_b64 exec, 0xffff
        buffer_store_dwordx4 v[28:31], v5, s[40:43], s38 offen sc1''')
        self.stamp(12)
        a('s_branch L_end')
        a('L_A_fin:')
        self.srd(44, 26, 8192)
        a(f'''
        v_and_b32 v12, 7, v1
        v_lshlrev_b32 v13, 1, v12
        v_lshrrev_b32 v14, 1, v6
        v_add_u32 v13, v13, v14
        v_and_b32 v14, 1, v6
        v_lshl_add_u32 v13, v14, 4, v13
        v_lshlrev_b32 v13, 2, v13''')
        for i in range(4):
            a(f'ds_bpermute_b32 v{140+i}, v13, v{28+i}\nds_bpermute_b32 v{144+i}, v13, v{156+i}')
        a(f'''
        v_lshlrev_b32 v4, 5, v12
        v_lshl_add_u32 v4, v6, 3, v4
        v_mul_u32_u24 v7, 7168, v6
        v_lshl_add_u32 v7, v3, 4, v7
        s_add_u32 s52, s53, 4096
        s_waitcnt lgkmcnt(0)
        L_A_h5:''')
        for t in range(7):
            a(f'buffer_load_dwordx4 v[{32+4*t}:{35+4*t}], v7, s[40:43], s{53-(t>>2)} offen offset:{(t&3)*1024} sc1')
        self.budget()
        for t in range(7):
            a(f's_waitcnt vmcnt({6-t})')
            a(f'v_mfma_f32_16x16x32_bf16 v[28:31], v[{32+4*t}:{35+4*t}], v[20:23], ' + ('0' if t == 0 else 'v[28:31]'))
            r = 32 + 4*t
            if t == 0: a(f'v_max3_u32 v12, v{r}, v{r+1}, v{r+2}\nv_max_u32 v12, v12, v{r+3}')
            else: a(f'v_max3_u32 v12, v12, v{r}, v{r+1}\nv_max3_u32 v12, v12, v{r+2}, v{r+3}')
        a('v_cmp_eq_u32 vcc, -1, v12\ns_cbranch_vccnz L_A_h5')
        self.stamp(12)
        for i in range(4): a(f'v_fma_f32 v{28+i}, v{28+i}, v{144+i}, v{140+i}')
        a(f'''v_cvt_pk_bf16_f32 v28, v28, v29
        v_cvt_pk_bf16_f32 v29, v30, v31
        s_mov_b32 s38, 0x00ff00ff
        s_mov_b32 s39, 0x00ff00ff
        s_mov_b64 exec, s[38:39]
        buffer_store_dwordx2 v[28:29], v4, s[44:47], s48 offen''')
        self.stamp(13)
        a('s_branch L_end')

    def ffn_dma(self, tag):
        a = self.a; o = self.o
        a(f'''
        s_sub_u32 s56, s32, 4              ; omega
        s_cmp_lt_u32 s35, 28
        s_cselect_b32 s48, s18, s24
        s_cselect_b32 s49, s19, s25
        s_movk_i32 s57, 6144
        s_cselect_b32 s57, 3584, s57
        s_mul_i32 s50, s57, 512
        s_mov_b32 s51, 0x20000
        s_lshl_b32 s58, s35, 7
        s_sub_u32 s38, s35, 26
        s_lshl_b32 s38, s38, 10
        s_lshl_b32 s39, s34, 7
        s_add_u32 s38, s38, s39
        s_cmp_lt_u32 s35, 28
        s_cselect_b32 s58, s58, s38
        v_lshrrev_b32 v4, 3, v1
        v_mul_lo_u32 v5, v4, s57
        v_bfe_u32 v4, v4, 1, 1
        s_and_b32 s38, s56, 1
        s_lshl_b32 s38, s38, 1
        v_or_b32 v4, s38, v4
        v_lshlrev_b32 v4, 1, v4
        v_and_b32 v6, 7, v1
        v_xor_b32 v4, v4, v6
        v_lshl_add_u32 v4, v4, 4, v5       ; W1 voffset
        s_lshl_b32 s38, s56, 5
        v_lshlrev_b32 v5, 4, v1
        v_xor_b32 v5, s38, v5              ; W2 voffset
        s_lshl_b32 s57, s57, 3
        ''')
        self.wait(C_PV, 4, 6, sleep=1)
        a(f'''s_mov_b32 s59, 0
        L_{tag}_f1:
        s_xor_b32 s38, s59, s34
        s_lshl_b32 s38, s38, 3
        s_add_u32 s38, s38, s56
        s_lshl_b32 m0, s38, 10
        s_mul_i32 s38, s38, s57
        s_add_u32 s38, s38, s58
        buffer_load_dwordx4 v4, s[48:51], s38 offen{o['nt_w']} lds
        s_waitcnt vmcnt({o['thr_t']})
        s_add_u32 s59, s59, 1
        s_cmp_lt_u32 s59, 8
        s_cbranch_scc1 L_{tag}_f1
        s_cmp_ge_u32 s35, 28
        s_cbranch_scc1 L_{tag}_f3
        s_mov_b32 s48, s20
        s_mov_b32 s49, s21
        s_and_b32 s38, s56, 3
        s_lshr_b32 s39, s56, 2
        s_lshl_b32 s39, s39, 3
        s_add_u32 s56, s38, s39
        s_lshl_b32 s58, s35, 16
        s_mov_b32 s59, 0
        L_{tag}_f2:
        s_xor_b32 s38, s59, s34
        s_and_b32 s39, s38, 1
        s_lshl_b32 s39, s39, 2
        s_lshr_b32 s38, s38, 1
        s_lshl_b32 s38, s38, 4
        s_add_u32 s38, s38, s39
        s_add_u32 s38, s38, s56
        s_lshl_b32 s38, s38, 10
        s_add_u32 m0, s38, 65536
        s_add_u32 s38, s38, s58
        buffer_load_dwordx4 v5, s[48:51], s38 offen{o['nt_w']} lds
        s_waitcnt vmcnt({o['thr_t']})
        s_add_u32 s59, s59, 1
        s_cmp_lt_u32 s59, 8
        s_cbranch_scc1 L_{tag}_f2
        L_{tag}_f3:
        ''')

    def groupB(self):
        a = self.a; o = self.o
        W = 40
        a('L_B:')
        self.srd(44, 8, 4194304)
        a(f'''
        v_lshrrev_b32 v4, 4, v1
        v_and_b32 v5, 15, v1
        v_lshlrev_b32 v2, 18, v4
        v_lshl_add_u32 v2, v5, 4, v2
        s_lshl_b32 s48, s33, 20
        s_lshl_b32 s38, s35, 8
        s_add_u32 s48, s48, s38
        s_and_b32 s49, s34, 3              ; rot
        s_barrier
        ''')
        n = 0
        for u in range(4):
            a(f's_xor_b32 s38, s49, {u}\ns_lshl_b32 s38, s38, 16\ns_add_u32 s38, s38, s48')
            for k in range(8):
                r = W + 32*u + 4*k
                a(f'buffer_load_dwordx4 v[{r}:{r+3}], v2, s[44:47], s38 offen{o["nt_w"]}')
                if k < 7: a('s_add_u32 s38, s38, 8192')
                n += 1
                if n == o['nb']: self.sig(C_WQ, 6)
        self.stamp(1)
        a(f'''
        v_and_b32 v6, 31, v1
        v_lshlrev_b32 v6, 3, v6
        v_lshrrev_b32 v5, 1, v5
        v_lshlrev_b32 v5, 4, v5
        v_lshl_add_u32 v7, v4, 9, v5
        s_lshl_b32 s38, s33, 11''')
        for u in range(4):
            a(f's_xor_b32 s{50+u}, s49, {u}\ns_lshl_b32 s{50+u}, s{50+u}, 7\ns_add_u32 s{50+u}, s{50+u}, s38')
        a(f'''
        v_and_b32 v4, 1, v1
        v_cmp_eq_u32 vcc, 1, v4
        v_mov_b32 v2, 0x0c0c0100
        v_mov_b32 v4, 0x01000c0c
        v_cndmask_b32 v2, v2, v4, vcc
        v_mov_b32 v3, 0x0c0c0302
        v_mov_b32 v4, 0x03020c0c
        v_cndmask_b32 v3, v3, v4, vcc
        L_B_fl:
        global_load_dword v4, v6, s[28:29] sc1''')
        self.budget()
        a('''s_waitcnt vmcnt(0)
        v_cmp_eq_u32 vcc, 0, v4
        s_cbranch_vccnz L_B_fl''')
        self.stamp(2)
        def hload():
            for u in range(4): a(f'buffer_load_dwordx4 v[{8+4*u}:{11+4*u}], v7, s[40:43], s{50+u} offen sc1')
        hload()
        for t in range(8): self.swaps(W + 16*t)
        a('s_branch L_B_h1\nL_B_h0:')
        hload()
        self.budget()
        a('L_B_h1:\ns_waitcnt vmcnt(0)')
        self.check(8, 16, 24)
        a('s_cbranch_vccnz L_B_h0')
        self.stamp(3)
        def perm(t, i):
            dst = (4 if t == 0 else W + 16*(t-1)) + i
            src = 8 + 2*t + (i >> 1)
            a(f'v_perm_b32 v{dst}, v{src}, v{src}, v{2+(i&1)}')
        for i in range(4): perm(0, i)
        for t in range(8):
            op = 4 if t == 0 else W + 16*(t-1)
            for p in range(4):
                r = W + 16*t + 4*p
                a(f'v_mfma_f32_16x16x32_bf16 v[{24+4*p}:{27+4*p}], v[{r}:{r+3}], v[{op}:{op+3}], ' + ('0' if t == 0 else f'v[{24+4*p}:{27+4*p}]'))
                if t < 7 and p < 2: perm(t+1, 2*p); perm(t+1, 2*p+1)
        a(f'''s_lshl_b32 s38, s33, 12
        s_add_u32 s38, s38, {S2P}
        v_lshl_add_u32 v4, v1, 4, s38''')
        for p in range(4): a(f'ds_write_b128 v4, v[{24+4*p}:{27+4*p}] offset:{p*1024}')
        self.sig(C_S2, 5)
        self.stamp(4)
        a(f'''
        v_lshlrev_b32 v2, 4, v1
        s_lshl_b32 s50, s34, 15
        s_lshl_b32 s38, s33, 13
        s_add_u32 s50, s50, s38
        s_add_u32 s50, s50, {QL}
        s_add_u32 s51, s50, 4096
        s_mul_i32 s38, s33, {8*QROW}
        s_add_u32 s38, s38, {QR}
        v_add_u32 v3, s38, v2''')
        self.wait(C_QP, 1, 5)
        self.stamp(5)
        a('L_B_q:')
        for t in range(8):
            a(f'buffer_load_dwordx4 v[{W+4*t}:{W+3+4*t}], v2, s[40:43], s{50+(t>>2)} offen offset:{(t&3)*1024} sc1')
        self.budget()
        a('s_waitcnt vmcnt(0)')
        self.check(W, 32, 5)
        a('''s_cbranch_vccnz L_B_q
        s_mov_b32 s38, -1
        s_mov_b32 s39, 0x3fffffff
        s_mov_b64 exec, s[38:39]''')
        for t in range(8): a(f'ds_write_b128 v3, v[{W+4*t}:{W+3+4*t}] offset:{t*QROW}')
        a('s_mov_b64 exec, -1')
        self.sig(C_Q, 5)
        self.stamp(6)
        self.srd(44, 12, 4194304)
        a(f'''
        v_lshrrev_b32 v4, 4, v1
        v_and_b32 v5, 15, v1
        v_lshlrev_b32 v2, 13, v4
        v_lshl_add_u32 v2, v5, 4, v2''')
        self.wait(C_ISS, 4, 6, sleep=1)
        for t in range(8):
            a(f'''s_xor_b32 s38, s34, {t}
            s_and_b32 s39, s38, 1
            s_lshl_b32 s39, s39, 19
            s_lshr_b32 s38, s38, 1
            s_lshl_b32 s38, s38, 15
            s_add_u32 s38, s38, s39
            s_add_u32 s38, s38, s48''')
            for i in range(4):
                r = W + 16*t + 4*i
                a(f's_add_u32 s39, s38, {(32*(i&1) + 16*(i>>1))*8192}')
                a(f'buffer_load_dwordx4 v[{r}:{r+3}], v2, s[44:47], s39 offen{o["nt_w"]}')
                if t or i == 3: a(f's_waitcnt vmcnt({o["thr_t"]})')
            if t: self.swaps(W + 16*(t-1))
        self.stamp(7)
        self.ffn_dma('B')
        self.swaps(W + 16*7)
        a(f'''
        v_and_b32 v2, 1, v1
        v_lshlrev_b32 v2, 9, v2
        v_lshrrev_b32 v4, 4, v1
        v_lshl_add_u32 v2, v4, 5, v2
        s_lshl_b32 s38, s33, 10
        s_add_u32 s38, s38, {CLB}
        v_add_u32 v2, s38, v2
        s_lshl_b32 s38, s33, 9
        s_add_u32 s38, s38, {CTXB}
        v_lshl_add_u32 v3, v1, 5, s38
        s_lshl_b32 s38, s33, 2
        v_add_u32 v5, s38, v0
        s_waitcnt vmcnt(0)''')
        self.sig(C_FFW, 6)
        self.stamp(8)
        self.wait(F_CL, 1, 6, addr='v5')
        self.stamp(9)
        def opr(t): return 4 + 4*t if t < 5 else W + 4*(t-5)
        def rdop(t): a(f'ds_read_b128 v[{opr(t)}:{opr(t)+3}], v2 offset:{128*(t>>1) + 16*(t&1)}')
        for t in range(5): rdop(t)
        for t in range(8):
            a(f's_waitcnt lgkmcnt({4 if t == 0 else 7-t})')
            for p in range(4):
                r = W + 16*t + 4*p
                a(f'v_mfma_f32_16x16x32_bf16 v[{24+4*p}:{27+4*p}], v[{opr(t)}:{opr(t)+3}], v[{r}:{r+3}], ' + ('0' if t == 0 else f'v[{24+4*p}:{27+4*p}]'))
            if t == 0:
                for u in range(5, 8): rdop(u)
        a(f'''s_mov_b64 exec, 0xffff
        ds_write2_b64 v3, v[24:25], v[28:29] offset0:0 offset1:1
        ds_write2_b64 v3, v[32:33], v[36:37] offset0:2 offset1:3
        s_mov_b64 exec, -1''')
        self.sig(C_CTX, 6)
        self.stamp(10)
        a('s_branch L_end')

    def groupC(self):
        a = self.a; o = self.o
        W = 40
        a('L_C:')
        a('s_cmp_lt_u32 s2, 32\ns_cbranch_scc1 L_C_s1\ns_barrier\ns_branch L_C_s1d\nL_C_s1:')
        self.srd(44, 22, 8192)
        self.silu_load(8, 2, 44)
        self.srd(44, 4, 8192)
        self.srd(48, 24, 3145728)
        for i in range(16): a(f'v_mov_b32 v{24+i}, 0x3f803f80')
        a(f'''
        v_and_b32 v2, 15, v1
        v_lshlrev_b32 v2, 10, v2
        v_lshrrev_b32 v3, 4, v1
        v_lshl_add_u32 v4, v3, 4, v2
        v_lshl_add_u32 v5, v3, 3, v2
        s_lshl_b32 s39, s55, 5
        s_mov_b32 s56, 0x00ff00ff
        s_mov_b32 s57, 0x00ff00ff
        s_mov_b64 exec, s[56:57]''')
        for s in range(4): a(f'buffer_load_dwordx4 v[{24+4*s}:{27+4*s}], v4, s[44:47], s38 offen offset:{64*s}')
        a(f'''buffer_load_dwordx2 v[6:7], v5, s[44:47], s39 offen
        s_mov_b64 exec, -1
        v_lshrrev_b32 v2, 2, v1
        v_mul_u32_u24 v4, 6144, v2
        v_lshrrev_b32 v2, 5, v1
        v_bfe_u32 v5, v1, 1, 1
        v_xor_b32 v2, v2, v5
        v_lshl_add_u32 v4, v2, 10, v4
        v_and_b32 v2, 1, v1
        v_lshl_add_u32 v4, v2, 4, v4
        s_mul_i32 s58, s33, {128*6144}
        s_add_u32 s58, s58, s39
        s_lshl_b32 s59, s33, 13
        s_add_u32 s59, s59, {S1W}
        s_lshl_b32 s60, s37, 1''')
        for i in range(8):
            a(f'''s_xor_b32 s38, s60, {i}
            s_lshl_b32 s39, s38, 10
            s_add_u32 m0, s39, s59
            s_mul_i32 s38, s38, {16*6144}
            s_add_u32 s38, s38, s58
            buffer_load_dwordx4 v4, s[48:51], s38 offen{o['nt_w']} lds''')
        a(f'''s_barrier
        v_bfe_u32 v2, v1, 2, 2
        v_lshl_add_u32 v2, v3, 3, v2
        v_lshlrev_b32 v2, 6, v2
        v_and_b32 v4, 1, v3
        v_lshl_add_u32 v2, v4, 5, v2
        v_and_b32 v4, 3, v1
        v_lshl_add_u32 v2, v4, 3, v2
        v_add_u32 v2, s59, v2
        v_xor_b32 v3, 32, v2
        s_waitcnt vmcnt(13)''')
        self.stamp(1)
        self.silu_calc(8, 40)
        a('s_waitcnt vmcnt(8)')
        for s in range(4):
            a(f'v_mfma_f32_16x16x32_bf16 v[88:91], v[{24+4*s}:{27+4*s}], v[{24+4*s}:{27+4*s}], ' + ('0' if s == 0 else 'v[88:91]'))
        a(f'''s_mul_i32 s38, s33, 3072
        s_add_u32 s38, s38, {S1P}
        v_lshl_add_u32 v4, v1, 4, s38
        s_waitcnt vmcnt(0)''')
        self.stamp(2)
        for s in range(4):
            for u in range(2):
                B = 48 + 8*s + 4*u
                a(f'ds_read_b64_tr_b16 v[{B}:{B+1}], v{2+u} offset:{s*2048}')
                a(f'ds_read_b64_tr_b16 v[{B+2}:{B+3}], v{2+u} offset:{s*2048+256}')
            if s == 2: a('s_waitcnt lgkmcnt(8)')
        for s in range(4):
            a(f's_waitcnt lgkmcnt({12-4*s})')
            for u in range(2):
                B = 48 + 8*s + 4*u
                a(f'v_mfma_f32_16x16x32_bf16 v[{80+4*u}:{83+4*u}], v[{B}:{B+3}], v[{8+4*s}:{11+4*s}], ' + ('0' if s == 0 else f'v[{80+4*u}:{83+4*u}]'))
        a('ds_write_b128 v4, v[88:91] offset:2048')
        for u in range(2): a(f'ds_write_b128 v4, v[{80+4*u}:{83+4*u}] offset:{u*1024}')
        self.sig(C_S1, 5)
        a(f'''s_cmp_lg_u32 s33, 0
        s_cbranch_scc1 L_C_s1d
        v_and_b32 v2, 7, v1
        v_lshrrev_b32 v3, 2, v2
        v_lshl_add_u32 v3, v3, 4, v2
        v_lshlrev_b32 v3, 4, v3
        v_and_b32 v5, 3, v1
        v_lshl_add_u32 v3, v5, 2, v3
        v_add_u32 v3, {S1P + 2048}, v3     ; sumsq
        v_lshlrev_b32 v2, 4, v2
        v_add_u32 v8, {S1P + 2048 + 512}, v2
        v_lshrrev_b32 v9, 5, v1
        v_lshl_add_u32 v2, v9, 7, v2
        v_bfe_u32 v9, v1, 4, 1
        v_lshl_add_u32 v2, v9, 3, v2
        v_lshlrev_b32 v12, 16, v6
        v_and_b32 v13, 0xffff0000, v6
        v_lshlrev_b32 v14, 16, v7
        v_and_b32 v15, 0xffff0000, v7
        s_lshl_b32 s39, s55, 8''')
        self.wait(C_S1, 4, 5)
        for w in range(4):
            a(f'ds_read_b32 v{16+w}, v8 offset:{w*3072}\nds_read_b32 v{20+w}, v3 offset:{w*3072}')
        for w in range(1, 4):
            for u in range(2): a(f'ds_read_b128 v[{40+8*w+4*u}:{43+8*w+4*u}], v4 offset:{w*3072+u*1024}')
        a(f'''s_mov_b32 s38, {f32(1/512)}
        s_waitcnt lgkmcnt(6)
        v_add_f32 v16, v16, v17
        v_add_f32 v20, v20, v21
        v_add_f32 v18, v18, v19
        v_add_f32 v22, v22, v23
        v_add_f32 v16, v16, v18
        v_add_f32 v20, v20, v22
        v_mul_f32 v16, s38, v16
        v_mul_f32 v20, s38, v20
        v_fma_f32 v20, -v16, v16, v20
        v_max_f32 v20, 0, v20
        v_add_f32 v20, {f32(1e-5)}, v20
        v_rsq_f32 v20, v20''')
        for i in range(4): a(f'v_sub_f32 v{12+i}, v{12+i}, v16')
        for i in range(4): a(f'v_mul_f32 v{12+i}, v{12+i}, v20')
        a('s_waitcnt lgkmcnt(0)')
        for r in range(8): a(f'v_add_f32 v{80+r}, v{80+r}, v{48+r}\nv_add_f32 v{56+r}, v{56+r}, v{64+r}')
        for r in range(8): a(f'v_add_f32 v{80+r}, v{80+r}, v{56+r}')
        for i in range(4): a(f'v_add_f32 v{80+i}, v{80+i}, v{12+i}')
        for i in range(4): a(f'v_fmac_f32 v{80+i}, v{84+i}, v{12+i}')
        a(f'''v_cvt_pk_bf16_f32 v80, v80, v81
        v_cvt_pk_bf16_f32 v81, v82, v83
        s_mov_b64 exec, s[56:57]
        buffer_store_dwordx2 v[80:81], v2, s[40:43], s39 offen sc1
        s_mov_b64 exec, -1''')
        self.stamp(3)
        a('L_C_s1d:')
        a('s_cmp_eq_u32 s33, 1\ns_cbranch_scc1 L_C_s3')
        self.sig(C_LATE, 5)
        a('s_branch L_C_t\nL_C_s3:')
        self.srd(44, 10, 4194304)
        a(f'''
        v_lshrrev_b32 v3, 4, v1
        v_and_b32 v2, 15, v1
        v_xor_b32 v4, v2, v3
        v_lshlrev_b32 v4, 4, v4
        v_lshl_add_u32 v4, v3, 13, v4
        v_xor_b32 v5, 64, v4
        v_xor_b32 v6, 0x80, v4
        v_xor_b32 v7, 0xc0, v4
        s_lshl_b32 s48, s34, 19
        s_lshl_b32 s38, s35, 8
        s_add_u32 s48, s48, s38''')
        for i in range(16):
            T = i >> 2
            a(f'''s_mov_b32 m0, {WUK + i*1024}
            s_add_u32 s38, s48, {(16*(i&3) + 8*(T>>1) + 4*(T&1))*8192}
            buffer_load_dwordx4 v{4+(i&3)}, s[44:47], s38 offen{o['nt_w']} lds''')
        a(f'''
        v_mov_b32 v8, -1
        v_mov_b32 v9, -1
        v_mov_b32 v10, -1
        v_mov_b32 v11, -1
        v_lshlrev_b32 v12, 4, v1
        s_add_u32 s38, s54, {STAT}
        buffer_store_dwordx4 v[8:11], v12, s[40:43], s38 offen sc1
        s_add_u32 s38, s54, {OUTP}
        buffer_store_dwordx4 v[8:11], v12, s[40:43], s38 offen sc1
        s_add_u32 s38, s54, {YP}
        buffer_store_dwordx4 v[8:11], v12, s[40:43], s38 offen sc1
        s_cmp_lt_u32 s35, 28
        s_cbranch_scc1 L_C_nm
        v_lshrrev_b32 v13, 3, v1
        v_lshlrev_b32 v13, 10, v13
        v_and_b32 v14, 7, v1
        v_lshl_add_u32 v13, v14, 4, v13
        s_sub_u32 s38, s35, 28
        s_lshl_b32 s38, s38, 13
        s_lshl_b32 s39, s34, 7
        s_add_u32 s38, s38, s39
        s_add_u32 s38, s38, {MOD}
        buffer_store_dwordx4 v[8:11], v13, s[40:43], s38 offen sc1
        L_C_nm:
        v_lshlrev_b32 v4, 2, v3
        v_xor_b32 v4, v4, v2
        v_lshlrev_b32 v4, 4, v4
        v_lshl_add_u32 v4, v2, 8, v4
        v_add_u32 v4, {WUK}, v4
        v_xor_b32 v5, 16, v4
        v_xor_b32 v6, 32, v4
        v_xor_b32 v7, 48, v4
        v_add_u32 v12, {S2P}, v12
        v_and_b32 v13, 1, v1
        v_lshlrev_b32 v14, 4, v13
        v_lshl_add_u32 v15, v3, 5, v14
        v_lshrrev_b32 v2, 1, v2
        v_lshl_add_u32 v15, v2, 15, v15
        s_mov_b32 s38, 0xffff
        v_lshlrev_b32 v14, v14, s38
        v_cmp_eq_u32 s[56:57], 1, v13
        s_lshl_b32 s49, s35, 10
        s_lshl_b32 s38, s34, 7
        s_add_u32 s49, s49, s38
        s_add_u32 s49, s49, {QL}
        s_mov_b32 s50, {f32(SC)}
        s_waitcnt vmcnt(0)''')
        for T in range(4):
            for j in range(4): a(f'ds_read_b128 v[{104+16*T+4*j}:{107+16*T+4*j}], v{4+j} offset:{T*4096}')
            a('s_waitcnt lgkmcnt(0)')
        self.sig(C_LATE, 5)
        self.stamp(4)
        self.wait(C_S2, 4, 5)
        self.stamp(5)
        for p in range(4):
            for w in range(4): a(f'ds_read_b128 v[{40+16*p+4*w}:{43+16*p+4*w}], v12 offset:{(w*4+p)*1024}')
            if p == 2: a('s_waitcnt lgkmcnt(8)')
        for p in range(4):
            a(f's_waitcnt lgkmcnt({12-4*p})')
            r = 40 + 16*p
            for j in range(4): a(f'v_add_f32 v{r+j}, v{r+j}, v{r+4+j}\nv_add_f32 v{r+8+j}, v{r+8+j}, v{r+12+j}')
            for j in range(4): a(f'v_add_f32 v{r+j}, v{r+j}, v{r+8+j}')
            for j in range(4): a(f'v_cvt_pk_bf16_f32 v{r+j}, v{r+j}, v{r+j}')
            for j in range(4): a(f'v_and_b32 v{16+4*j+p}, v{r+j}, v14')
        for j in range(4):
            for T in range(4):
                r = 104 + 16*T + 4*j
                a(f'v_mfma_f32_16x16x32_bf16 v[{40+4*T}:{43+4*T}], v[{r}:{r+3}], v[{16+4*j}:{19+4*j}], ' + ('0' if j == 0 else f'v[{40+4*T}:{43+4*T}]'))
        for r in range(16): a(f'v_add_f32_dpp v{40+r}, v{40+r}, v{40+r} quad_perm:[1,0,3,2] {DPPF}')
        for r in range(8): a(f'v_cndmask_b32 v{40+r}, v{40+r}, v{48+r}, s[56:57]')
        for r in range(8): a(f'v_mul_f32 v{40+r}, s50, v{40+r}')
        for r in range(4): a(f'v_cvt_pk_bf16_f32 v{40+r}, v{40+2*r}, v{41+2*r}')
        a('buffer_store_dwordx4 v[40:43], v15, s[40:43], s49 offen sc1')
        self.stamp(6)
        a('s_waitcnt vmcnt(0)')
        self.sig(C_QP, 5)
        a('L_C_t:')
        self.srd(44, 14, 4194304)
        a(f'''
        v_lshrrev_b32 v4, 4, v1
        v_and_b32 v5, 15, v1
        v_lshlrev_b32 v2, 15, v4
        v_lshl_add_u32 v2, v5, 4, v2
        s_lshl_b32 s48, s35, 17
        s_lshl_b32 s38, s33, 8
        s_add_u32 s48, s48, s38''')
        self.wait(C_ISS, 4, 6, sleep=1)
        for t in range(8):
            a(f's_xor_b32 s38, s34, {t}\ns_lshl_b32 s38, s38, 12\ns_add_u32 s38, s38, s48')
            for i in range(4):
                r = W + 16*t + 4*i
                a(f'buffer_load_dwordx4 v[{r}:{r+3}], v2, s[44:47], s38 offen offset:{1024*i}{o["nt_w"]}')
                if t or i == 3: a(f's_waitcnt vmcnt({o["thr_t"]})')
            if t: self.swaps(W + 16*(t-1))
        self.stamp(7)
        self.ffn_dma('C')
        self.swaps(W + 16*7)
        a(f'''
        v_and_b32 v2, 7, v1
        v_xor_b32 v2, s34, v2
        v_lshlrev_b32 v2, 4, v2
        v_lshrrev_b32 v4, 4, v1
        v_lshl_add_u32 v2, v4, 7, v2
        v_bfe_u32 v4, v1, 3, 1
        v_lshl_add_u32 v2, v4, 10, v2
        v_add_u32 v2, {CTXB}, v2
        v_and_b32 v3, 1, v1
        v_lshlrev_b32 v3, 4, v3
        s_mov_b32 s38, 0xffff
        v_lshlrev_b32 v3, v3, s38
        v_lshlrev_b32 v4, 4, v1
        s_lshl_b32 s38, s33, 8
        s_add_u32 s48, s54, s38
        s_add_u32 s48, s48, {OUTP}
        s_waitcnt vmcnt(0)''')
        self.sig(C_FFW, 6)
        self.stamp(8)
        self.wait(C_CTX, 4, 6)
        self.stamp(9)
        a('ds_read_b128 v[8:11], v2\nds_read_b128 v[12:15], v2 offset:512\ns_waitcnt lgkmcnt(0)')
        for i in range(4): a(f'v_add_f32 v{8+i}, v{8+i}, v{12+i}')
        for i in range(4): a(f'v_add_f32_dpp v{8+i}, v{8+i}, v{8+i} row_ror:8 {DPPF}')
        for i in range(4): a(f'v_cvt_pk_bf16_f32 v{8+i}, v{8+i}, v{8+i}')
        def bc(t, i): a(f'v_and_b32_dpp v{16+4*(t&1)+i}, v{8+i}, v3 row_newbcast:{t} {DPPF}')
        for i in range(4): bc(0, i)
        for t in range(8):
            op = 16 + 4*(t & 1)
            for p in range(4):
                r = W + 16*t + 4*p
                a(f'v_mfma_f32_16x16x32_bf16 v[{24+4*p}:{27+4*p}], v[{op}:{op+3}], v[{r}:{r+3}], ' + ('0' if t == 0 else f'v[{24+4*p}:{27+4*p}]'))
                if t < 7 and p < 2: bc(t+1, 2*p); bc(t+1, 2*p+1)
        for p in range(4): a(f'v_cvt_pk_bf16_f32 v{8+p}, v{24+4*p}, v{25+4*p}')
        a('''s_mov_b64 exec, 0xffff
        buffer_store_dwordx4 v[8:11], v4, s[40:43], s48 offen sc1
        s_mov_b64 exec, -1''')
        self.stamp(10)
        a('s_waitcnt vmcnt(0)')
        self.sig(C_OUT, 6)

    def epilogue(self):
        a = self.a
        a('L_end:')
        if 'leak' in self.o:
            g, k = divmod(self.o['leak'], 100)
            self.stamp(15)
            a(f'''s_waitcnt lgkmcnt(0)
            s_lshr_b32 s38, s32, 2
            s_cmp_lg_u32 s38, {g}
            s_cbranch_scc1 L_exit
            s_cmp_eq_u32 s{64+2*k}, 0
            s_cbranch_scc1 L_exit
            s_add_u32 s39, s{64+2*k}, 6000
            L_lk:
            s_memrealtime s[56:57]
            s_sub_u32 s3, s3, 1
            s_cbranch_scc1 L_exit
            s_waitcnt lgkmcnt(0)
            s_sub_u32 s38, s56, s39
            s_cmp_lt_i32 s38, 0
            s_cbranch_scc1 L_lk''')
        if self.dbg:
            self.stamp(15)
            a('s_waitcnt lgkmcnt(0)\ns_mov_b64 exec, -1')
            for k in range(16): a(f'v_mov_b32 v{8+k}, s{64+2*k}')
            a(f'''v_mov_b32 v22, s3
            s_mul_i32 s38, s2, 12
            s_add_u32 s38, s38, s32
            s_lshl_b32 s38, s38, 6
            s_add_u32 s38, s38, {STMP}
            v_mov_b32 v2, 0
            s_mov_b64 exec, 1''')
            for k in range(4): a(f'buffer_store_dwordx4 v[{8+4*k}:{11+4*k}], v2, s[40:43], s38 offen offset:{16*k}')
        a('L_exit:\ns_endpgm\nL_codeend:')

    def build(self):
        a = self.a; K = NAME + '_kernel'
        kstart(a, K)
        n0 = len(a.L)
        if self.dbg or 'leak' in self.o:
            for k in range(1, 16): a(f's_mov_b32 s{64+2*k}, 0')
        self.prologue(); self.groupA(); self.groupB(); self.groupC(); self.epilogue()
        body, nn = hazard.fix(a.L[n0:])
        a.L[n0:] = body
        kdesc(a, K, 168, 168)
        h = Asm()
        pre, post = self.o.get('pre', 0), self.o.get('post', 0)
        if pre or post:
            d = ('nop_kernel', self.o.get('ng', 256), self.o.get('nb2', 64), self.o.get('nl', 0))
            header(h, [d]*pre + [(K, 256, 768, 163840)] + [d]*post)
            kstart(a, 'nop_kernel'); a('s_endpgm'); kdesc(a, 'nop_kernel', 8, 8)
        else:
            header(h, [(None, 256, 768, 163840)])
        return h.text() + a.text(), nn

if __name__ == '__main__':
    out = sys.argv[1]
    dbg = 'dbg' in sys.argv[2:]
    opt = {}
    for x in sys.argv[2:]:
        if '=' in x:
            k, v = x.split('=')
            opt[k] = int(v) if v.lstrip('-').isdigit() else (' ' + v if v else '')
    t, nn = G(dbg, opt).build()
    open(out, 'w').write(t)
    print('written', out, 'nops inserted', nn)
```

```python
import sys, math
from asmlib import *
import hazard

HBUF = 0x0
MOD  = 0x150000
QL   = 0x10000
STAT = 0x50000
YP   = 0x90000
OUTP = 0xD0000
CTXP = 0x110000
PART = 0x200000
STMP = 0xA00000
WSSZ = 0x1000000
KV   = 0
QR   = 131072
QROW = 1008
S1W  = KV + 98304
WUK  = KV + 98304
SYNC = QR + QROW*24 + 992
def pad(i, w): return QROW*i + 4*w
MAXO = QR + 32256 - SYNC
C_S1, C_S2, C_LATE, C_WQ = pad(0,0), pad(0,1), pad(0,2), pad(0,3)
C_Q, C_FR, C_P, C_PV = pad(1,0), pad(1,1), pad(1,2), pad(1,3)
C_G, C_QK, C_UK, C_QS = pad(2,0), pad(2,1), pad(2,2), pad(2,3)
C_CTX, C_OUT, C_TRG, C_QP = pad(3,0), pad(3,1), pad(3,2), pad(3,3)
C_U, C_MO, C_CLR, C_GR = pad(4,0), pad(4,1), pad(4,2), pad(4,3)
F_S1W = pad(5,0)
C_CL, C_CX, C_X2, C_WL = pad(6,0), pad(6,1), pad(6,2), pad(6,3)
C_FFW, C_T5, C_T2, C_T3 = pad(7,0), pad(7,1), pad(7,2), pad(7,3)
C_T0, C_T1 = C_TRG, C_PV
S1P = QR; S2P = QR
PB = QR; LB = QR + 8192; COEF = QR + 8704; CLB = QR + 10240; RS = 528; X2B = KV
H2B = QR + 10240; UB = QR + 12288; LNB = QR + 14336
MOP = KV + 65536
SC = 128**-0.5 * math.log2(math.e)
import struct
def f32(x): return '0x%08x' % struct.unpack('<I', struct.pack('<f', x))[0]
DPPF = 'row_mask:0xf bank_mask:0xf'

class G:
    def __init__(self, dbg=False, opt=None):
        self.a = Asm(); self.dbg = dbg; self.n = 0; self.cold = []
        self.o = dict(thr=7, nt_w='', nt_kv=' nt', thr_b=31, thr_c=31, thr_f=6, trg1=5, tuv=5, two=3, tmo=5, early=0, fr=1, fft=1, hp=1, cxw=1, thr_m=31, ga=1, nq=0, wl=1, ps=0, kvt=0, kvb=4, mot=1, nA=0, nB=2, thr1=3, n2=8, thr2=3, qf=0, qp=1, qa=1, f2=0, ukl=1, d2=0, ukt=1, fq=4)
        if opt: self.o.update(opt)
    def lab(self, p):
        self.n += 1; return f'L_{p}{self.n}'
    def stamp(self, k):
        if self.dbg or 'leak' in self.o: self.a(f's_mem{"" if self.o.get("cyc") else "real"}time s[{64+2*k}:{65+2*k}]')
    def sig(self, off, tmp):
        self.a(f'''v_mov_b32 v{tmp}, 1
        s_mov_b64 exec, 1
        ds_add_u32 v0, v{tmp} offset:{off}
        s_mov_b64 exec, -1''')
    def wait(self, off, target, tmp, sleep=0, addr='v0'):
        L = self.lab('w')
        self.a(f'{L}:')
        if sleep: self.a(f's_sleep {sleep}')
        self.a(f'''ds_read_b32 v{tmp}, {addr} offset:{off}
        s_sub_u32 s3, s3, 1
        s_cbranch_scc1 L_end
        s_waitcnt lgkmcnt(0)
        v_cmp_gt_u32 vcc, {target}, v{tmp}
        s_cbranch_vccnz {L}''')
    def srd(self, s, p, size):
        self.a(f'''s_mov_b32 s{s}, s{p}
        s_mov_b32 s{s+1}, s{p+1}
        s_mov_b32 s{s+2}, {size}
        s_mov_b32 s{s+3}, 0x20000''')
    def check(self, r0, n, tmp):
        a = self.a
        a(f'v_max3_u32 v{tmp}, v{r0}, v{r0+1}, v{r0+2}') if n >= 3 else a(f'v_max_u32 v{tmp}, v{r0}, v{r0+n-1}')
        i = 3
        while i < n:
            if i + 1 < n: a(f'v_max3_u32 v{tmp}, v{tmp}, v{r0+i}, v{r0+i+1}'); i += 2
            else: a(f'v_max_u32 v{tmp}, v{tmp}, v{r0+i}'); i += 1
        a(f'v_cmp_eq_u32 vcc, -1, v{tmp}')
    def trig(self, point, tmp):
        o = self.o
        if point in (o['trg1'], o['tuv'], o['two'], o['tmo']):
            self.sig({0: C_T0, 5: C_T5, 1: C_T1, 2: C_T2, 3: C_T3}[point], tmp)
    def twait(self, point, tmp):
        if point == 6: self.wait(C_CL, 4, tmp, sleep=1)
        elif point == 7: self.wait(C_CL, 8, tmp, sleep=1)
        else: self.wait({0: C_T0, 5: C_T5, 1: C_T1, 2: C_T2, 3: C_T3}[point], 4, tmp, sleep=1)
    def flagpoll(self, z, t, off=0, sleep=0):
        L = self.lab('fl')
        self.a(f'v_mov_b32 v{z}, 0\n{L}:')
        if sleep: self.a(f's_sleep {sleep}')
        self.a(f'global_load_dword v{t}, v{z}, s[28:29] offset:{off} sc1')
        self.budget()
        self.a(f's_waitcnt vmcnt(0)\nv_cmp_eq_u32 vcc, 0, v{t}\ns_cbranch_vccnz {L}')
    def budget(self):
        self.a('s_sub_u32 s3, s3, 1\ns_cbranch_scc1 L_end')
    def swaps(self, base):
        for i in range(4):
            for p in range(i+1, 4):
                self.a(f'v_swap_b32 v{base+4*i+p}, v{base+4*p+i}')
    def red32(self, op, r, t):
        a = self.a
        for m in ('quad_perm:[1,0,3,2]', 'quad_perm:[2,3,0,1]', 'row_half_mirror', 'row_mirror'):
            a(f'{op}_dpp v{r}, v{r}, v{r} {m} {DPPF}')
        a(f'v_mov_b32 v{t}, v{r}')
        a(f'v_permlane16_swap_b32 v{r}, v{t}')
        a(f'{op} v{r}, v{r}, v{t}')
    def slotmasks(self, m, lane, t):
        a = self.a
        a(f'''v_and_b32 v{t}, 1, v{lane}
        v_lshlrev_b32 v{t}, 4, v{t}
        s_mov_b32 s38, 0xffff
        v_lshlrev_b32 v{t}, v{t}, s38
        v_bfe_u32 v{t+1}, v{lane}, 1, 2''')
        for i in range(4):
            a(f'v_cmp_eq_u32 vcc, {i}, v{t+1}')
            a(f'v_cndmask_b32 v{m+i}, 0, v{t}, vcc')
    def silu_load(self, raw, t, srd):
        a = self.a
        a(f'''v_and_b32 v{t}, 7, v1
        v_lshlrev_b32 v{t}, 10, v{t}
        v_bfe_u32 v{t+1}, v1, 3, 1
        v_lshl_add_u32 v{t}, v{t+1}, 7, v{t}
        v_lshrrev_b32 v{t+1}, 4, v1
        v_lshl_add_u32 v{t}, v{t+1}, 4, v{t}
        s_lshl_b32 s38, s33, 8
        buffer_load_dwordx4 v[{raw}:{raw+3}], v{t}, s[{srd}:{srd+3}], s38 offen
        buffer_load_dwordx4 v[{raw+4}:{raw+7}], v{t}, s[{srd}:{srd+3}], s38 offen offset:64''')
    def silu_calc(self, raw, t, mid=None):
        a = self.a
        a(f's_mov_b32 s38, {f32(-math.log2(math.e))}')
        for i in range(8):
            a(f'''v_lshlrev_b32 v{t}, 16, v{raw+i}
            v_and_b32 v{t+1}, 0xffff0000, v{raw+i}
            v_mul_f32 v{t+2}, s38, v{t}
            v_mul_f32 v{t+3}, s38, v{t+1}
            v_exp_f32 v{t+2}, v{t+2}
            v_exp_f32 v{t+3}, v{t+3}
            v_add_f32 v{t+2}, 1.0, v{t+2}
            v_add_f32 v{t+3}, 1.0, v{t+3}
            v_rcp_f32 v{t+2}, v{t+2}
            v_rcp_f32 v{t+3}, v{t+3}
            v_mul_f32 v{t}, v{t}, v{t+2}
            v_mul_f32 v{t+1}, v{t+1}, v{t+3}
            v_cvt_pk_bf16_f32 v{raw+i}, v{t}, v{t+1}''')
            if i == 0 and mid: mid()
        for i in range(8):
            a(f'v_mov_b32_dpp v{raw+8+i}, v{raw+i} row_ror:8 {DPPF}')

    def prologue(self):
        a = self.a
        self.stamp(0)
        a(f'''
        s_cmpk_ge_u32 s2, 256
        s_cbranch_scc1 L_exit
        s_load_dwordx16 s[4:19], s[0:1], 0
        s_load_dwordx8 s[20:27], s[0:1], 64
        s_load_dwordx4 s[28:31], s[0:1], 96
        v_lshrrev_b32 v2, 6, v0
        v_and_b32 v1, 63, v0
        v_readfirstlane_b32 s32, v2
        s_lshr_b32 s37, s2, 3
        s_getpc_b64 s[52:53]
        L_pc:
        s_mul_i32 s38, s37, 12
        s_add_u32 s38, s38, s32
        s_lshl_b32 s38, s38, 7
        s_min_u32 s38, s38, L_codeend-L_pc-4
        v_mov_b32 v2, s38
        global_load_dword v167, v2, s[52:53]
        s_and_b32 s36, s2, 7               ; x
        s_and_b32 s34, s37, 7              ; b
        s_lshr_b32 s37, s37, 3             ; jj
        s_lshl3_add_u32 s35, s37, s36      ; j
        s_and_b32 s33, s32, 3              ; w
        s_cmp_lt_u32 s32, 4
        s_cbranch_scc1 L_pA
        s_cmp_lt_u32 s32, 8
        s_cbranch_scc1 L_pB
        s_cmp_eq_u32 s34, 4
        s_cbranch_scc1 L_Cs
        s_branch L_Co
        L_pB:
        s_cmp_lt_u32 s34, 4
        s_cbranch_scc1 L_Bc
        s_branch L_Be
        L_pA:
        s_cmp_lg_u32 s32, 0
        s_cbranch_scc1 L_A
        s_cmp_lt_u32 s34, 4
        s_cbranch_scc1 L_pT
        s_cmp_lg_u32 s34, 4
        s_cbranch_scc1 L_A
        v_lshlrev_b32 v2, 7, v1
        s_waitcnt lgkmcnt(0)
        global_load_dword v166, v2, s[22:23]
        global_load_dword v166, v2, s[4:5]
        s_branch L_A
        L_pT:
        v_and_b32 v3, 1, v1
        v_lshrrev_b32 v2, 1, v1
        s_lshl2_add_u32 s38, s37, s34
        v_lshl_add_u32 v2, s38, 5, v2
        v_mul_u32_u24 v2, 6, v2
        v_add_u32 v2, v2, v3
        s_lshl_b32 s39, s36, 7
        v_lshl_add_u32 v2, v2, 10, s39
        s_waitcnt lgkmcnt(0)
        global_load_dword v166, v2, s[24:25]
        ''')
    def late(self):
        a = self.a
        if 'leak' in self.o:
            for k in range(1, 16): a(f's_mov_b32 s{64+2*k}, 0')
        self.srd(40, 30, WSSZ)
        a(f'''
        s_mov_b32 s3, 0x400000
        v_mov_b32 v0, {SYNC}
        s_lshl_b32 s54, s34, 5
        s_add_u32 s54, s54, s35
        s_lshl_b32 s54, s54, 10            ; (b*32+j)*1024
        s_and_b32 s96, s36, 3
        s_and_b32 s39, s34, 4
        s_add_u32 s96, s96, s39
        ''')
    def pidx(self): self.a('s_lshl_b32 s55, s36, 2\ns_add_u32 s55, s55, s37            ; p')

    def dma_cb(self, thr):
        a = self.a; o = self.o
        for kb in range(4):
            a(f'''s_add_u32 m0, s49, {kb*1024}
            s_add_u32 s38, s48, {kb*8192}
            buffer_load_dwordx4 v{2+(kb&1)}, s[44:47], s38 offen{o['nt_kv']} lds
            s_waitcnt vmcnt({thr})''')
        a('''s_add_u32 s49, s49, 16384
        s_add_u32 s48, s48, 128
        s_add_u32 s50, s50, 1''')
    def groupA(self):
        a = self.a; o = self.o
        a(f'''L_A:
        v_mov_b32 v8, -1
        v_mov_b32 v9, -1
        v_mov_b32 v10, -1
        v_mov_b32 v11, -1
        v_lshlrev_b32 v14, 4, v1
        s_waitcnt lgkmcnt(0)''')
        self.late()
        a(f'''
        s_xor_b32 s38, s2, 40
        s_or_b32 s38, s38, s33
        s_cbranch_scc1 L_A_nx
        s_movk_i32 s39, 4096''')
        for i in range(4): a(f'buffer_store_dwordx4 v[8:11], v14, s[40:43], 0 offen offset:{1024*i} sc1')
        for i in range(4): a(f'buffer_store_dwordx4 v[8:11], v14, s[40:43], s39 offen offset:{1024*i} sc1')
        a(f'''L_A_nx:
        s_xor_b32 s38, s34, 4
        s_xor_b32 s39, s33, 1
        s_or_b32 s38, s38, s39
        s_cbranch_scc1 L_A_nc''')
        self.pidx()
        a(f'''s_lshl_b32 s38, s55, 13
        s_add_u32 s38, s38, {QL}
        s_add_u32 s39, s38, 4096''')
        for i in range(4): a(f'buffer_store_dwordx4 v[8:11], v14, s[40:43], s38 offen offset:{1024*i} sc1')
        for i in range(4): a(f'buffer_store_dwordx4 v[8:11], v14, s[40:43], s39 offen offset:{1024*i} sc1')
        a(f'''L_A_nc:
        s_cmp_lg_u32 s33, 3
        s_cbranch_scc1 L_noinit
        v_mul_u32_u24 v13, {QROW}, v1
        v_mov_b32 v4, 0
        v_add_u32 v13, v13, v0
        v_mov_b32 v5, v4
        v_mov_b32 v6, v4
        v_mov_b32 v7, v4
        v_add_u32 v12, v14, v0
        s_mov_b64 exec, 0xff
        ds_write_b128 v13, v[4:7]
        s_mov_b32 exec_lo, -1
        ds_write_b128 v12, v[8:11] offset:{MAXO}
        s_mov_b64 exec, -1
        L_noinit:''')
        self.srd(44, 6, 33554432)
        a(f'''
        s_and_b32 s97, s36, 4
        s_and_b32 s39, s34, 3
        s_add_u32 s97, s97, s39
        s_lshl_b32 s97, s97, 2
        s_add_u32 s97, s97, s37
        s_lshl_b32 s61, s96, 5
        s_add_u32 s61, s61, s97
        s_lshl_b32 s61, s61, 10
        v_lshrrev_b32 v4, 3, v1            ; rho
        v_bfe_u32 v5, v4, 1, 1
        v_lshlrev_b32 v5, 2, v5
        v_bfe_u32 v6, v4, 2, 1
        v_or_b32 v5, v5, v6
        v_and_b32 v6, 7, v1
        v_xor_b32 v5, v5, v6
        v_lshlrev_b32 v5, 4, v5
        v_lshl_add_u32 v2, v4, 10, v5      ; voffE
        v_xor_b32 v3, 32, v2               ; voffO
        s_lshl_b32 s48, s61, 7
        s_lshl_b32 s38, s33, 15
        s_add_u32 s48, s48, s38
        s_lshl_b32 s49, s33, 12
        s_mov_b32 s50, 0
        s_cmp_lt_u32 s34, 5
        s_cselect_b32 s52, 8, {o['n2']}
        s_waitcnt lgkmcnt(0)
        s_barrier
        s_cmp_lt_u32 s34, 5
        s_cbranch_scc1 L_A_hold
        s_xor_b32 s38, s2, 40
        s_or_b32 s38, s38, s33
        s_cbranch_scc1 L_A_nx2
        s_mov_b64 exec, 1
        s_waitcnt vmcnt(0)
        global_store_dword v14, v8, s[28:29] sc1
        s_mov_b64 exec, -1''')
        self.stamp(13)
        a('L_A_nx2:')
        if o['d2']:
            a(f'''s_mov_b32 m0, s49
            s_nop 0
            buffer_load_dwordx4 v2, s[44:47], s48 offen lds
            s_waitcnt vmcnt(0)''')
        a('L_A_go:')
        self.stamp(1)
        a('''L_A_dma:
        s_cmp_lg_u32 s50, 6
        s_cbranch_scc1 L_A_dma1''')
        self.wait(C_LATE, 4, 8)
        a('L_A_dma1:')
        if o['nq']:
            a(f's_cmp_lg_u32 s50, {o["nq"]}\ns_cbranch_scc1 L_A_dma4')
            self.sig(C_G, 8)
            a('L_A_dma4:')
        if o['n2'] < 8:
            a(f'''s_cmp_lt_u32 s50, s52
            s_cbranch_scc1 L_A_dma2''')
            self.dma_cb(o['thr2'])
            a('s_branch L_A_dma3\nL_A_dma2:')
        self.dma_cb(o['thr'])
        a('''L_A_dma3:
        s_cmp_lt_u32 s50, 8
        s_cbranch_scc1 L_A_dma
        s_branch L_A_iss
        L_A_hold:
        s_xor_b32 s38, s34, 4
        s_xor_b32 s39, s33, 1
        s_or_b32 s38, s38, s39
        s_cbranch_scc1 L_A_hold1''')
        self.wait(C_QK, o['fq'], 8, sleep=1)
        self.flagpoll(4, 5)
        self.sig(C_CLR, 8)
        self.stamp(13)
        a('L_A_hold1:')
        a('s_cmp_ge_u32 s34, 4\ns_cbranch_scc1 L_A_hold2')
        for n, ev, cnt, tag in ((o['nA'], C_UK, 2, 'a'), (o['nB'], C_WQ, 4, 'b')):
            if n == 0 or n >= 8: continue
            self.wait(ev, cnt, 8, sleep=1)
            a(f's_add_u32 s51, s50, {n}\nL_A_sl{tag}:')
            self.dma_cb(o['thr1'])
            a(f's_cmp_lt_u32 s50, s51\ns_cbranch_scc1 L_A_sl{tag}')
        if o['nA'] >= 8: self.wait(C_UK, 2, 8, sleep=1)
        elif o['nB'] >= 8: self.wait(C_WQ, 4, 8, sleep=1)
        else: self.wait(C_QS, 2, 8, sleep=1)
        a('s_branch L_A_go\nL_A_hold2:')
        self.wait(C_WQ, 4, 8, sleep=1)
        a('s_branch L_A_go')
        a('L_A_iss:')
        if o['kvt']:
            a(f'''s_cmp_lt_u32 s34, {o['kvb']}
            s_cbranch_scc1 L_A_nt
            v_and_b32 v4, 31, v1
            v_lshrrev_b32 v5, 5, v1
            v_lshlrev_b32 v4, 10, v4
            v_lshl_add_u32 v4, v5, 7, v4
            s_sub_u32 s38, s48, {(4 << 22) + 256}''')
            for k in range(o['kvt']):
                a('buffer_load_dword v166, v4, s[44:47], s38 offen')
                if k + 1 < o['kvt']: a('s_sub_u32 s38, s38, 256')
            a('L_A_nt:')
        self.trig(0, 8)
        self.stamp(2)
        a(f'''
        v_and_b32 v9, 31, v1
        v_lshrrev_b32 v10, 5, v1           ; h
        v_bfe_u32 v4, v9, 1, 1
        v_lshlrev_b32 v4, 2, v4
        v_bfe_u32 v5, v9, 2, 2
        v_or_b32 v4, v4, v5                ; f
        v_xor_b32 v4, v4, v10
        v_lshlrev_b32 v4, 4, v4
        v_lshl_add_u32 v4, v9, 7, v4
        s_lshl_b32 s38, s33, 12
        v_add_u32 v4, s38, v4
        v_xor_b32 v5, 32, v4
        v_xor_b32 v6, 64, v4
        v_xor_b32 v7, 0x60, v4
        v_mul_u32_u24 v8, {QROW}, v9
        v_lshl_add_u32 v8, v10, 4, v8
        v_add_u32 v8, {QR}, v8
        v_lshlrev_b32 v11, 10, v9
        v_lshl_add_u32 v11, v10, 4, v11
        s_lshl_b32 s38, s96, 15
        s_add_u32 s38, s38, {QL}
        ''')
        self.wait(C_Q, 4, 16)
        self.stamp(3)
        a('buffer_load_dwordx4 v[12:15], v11, s[40:43], s38 offen offset:992 sc1')
        self.trig(5, 16)
        D = 4
        def rd(t):
            cb = t >> 2
            if t == 16:
                for u in range(4): a(f'v_add_u32 v{4+u}, 0x10000, v{4+u}')
            if t == 28: a('s_waitcnt vmcnt(0)')
            elif t % 4 == 0 and 4*(7-cb) < o['thr']: a(f's_waitcnt vmcnt({4*(7-cb)+1})')
            a(f'ds_read_b128 v[{32+4*(t%D)}:{35+4*(t%D)}], v{4+(t&3)} offset:{(cb&3)*16384}')
            if t < 31: a(f'ds_read_b128 v[{48+4*(t%D)}:{51+4*(t%D)}], v8 offset:{32*t}')
        for t in range(D-1): rd(t)
        for t in range(32):
            if t + D - 1 < 32: rd(t + D - 1)
            out = sum((2 if u < 31 else 1) for u in range(t+1, min(t+D, 32)))
            a(f's_waitcnt lgkmcnt({out})')
            q = f'v[{48+4*(t%D)}:{51+4*(t%D)}]' if t < 31 else 'v[12:15]'
            a(f'v_mfma_f32_32x32x16_bf16 v[16:31], v[{32+4*(t%D)}:{35+4*(t%D)}], {q}, ' + ('0' if t == 0 else 'v[16:31]'))
        a(f'''
        v_bfe_u32 v32, v1, 2, 2            ; r'
        v_lshl_add_u32 v33, v10, 2, v32    ; rho = 4h + r'
        v_lshrrev_b32 v32, 1, v32
        v_lshl_or_b32 v32, v32, 2, v10     ; f (nu=0)
        v_bfe_u32 v34, v1, 4, 1
        v_bfe_u32 v35, v1, 1, 1
        v_lshl_or_b32 v34, v34, 1, v35
        v_xor_b32 v32, v32, v34
        v_lshlrev_b32 v32, 4, v32
        v_lshl_add_u32 v32, v33, 7, v32
        v_and_b32 v33, 1, v1
        v_lshl_add_u32 v32, v33, 3, v32
        s_mul_i32 s38, s33, {32768+4096}
        v_add_u32 v4, s38, v32
        v_xor_b32 v5, {1024+32}, v4
        v_xor_b32 v6, 64, v4
        v_xor_b32 v7, {1024+32+64}, v4
        v_lshl_add_u32 v11, v9, 4, v0
        s_lshl_b32 s38, s33, 2
        v_add_u32 v12, s38, v11
        ''')
        self.stamp(4)
        a('v_max3_f32 v13, v16, v17, v18')
        for r in range(19, 31, 2): a(f'v_max3_f32 v13, v13, v{r}, v{r+1}')
        a(f'''v_max_f32 v13, v13, v31
        v_mov_b32 v14, v13
        v_permlane32_swap_b32 v13, v14
        v_max_f32 v13, v13, v14
        ds_write_b32 v12, v13 offset:{MAXO}
        L_A_mx:
        ds_read_b128 v[32:35], v11 offset:{MAXO}''')
        self.budget()
        a('s_waitcnt lgkmcnt(0)')
        self.check(32, 4, 36)
        a(f'''s_cbranch_vccnz L_A_mx
        v_max3_f32 v13, v32, v33, v34
        v_max_f32 v13, v13, v35
        s_mov_b32 s39, {f32(SC)}
        v_mul_f32 v13, s39, v13''')
        def rv(i):
            kt, u, ct = i >> 3, (i >> 2) & 1, i & 3
            if i and i % 8 == 0:
                x = (kt ^ (kt-1)) * 4096
                for r in range(4): a(f'v_xor_b32 v{4+r}, {x}, v{4+r}')
            B = 32 + 4*(i % 8)
            off = (ct >> 1)*16384 + u*2048
            a(f'ds_read_b64_tr_b16 v[{B}:{B+1}], v{4+2*(ct&1)} offset:{off}')
            a(f'ds_read_b64_tr_b16 v[{B+2}:{B+3}], v{5+2*(ct&1)} offset:{off}')
        DV = 5
        for i in range(DV-1): rv(i)
        for r in range(16): a(f'v_fma_f32 v{16+r}, v{16+r}, s39, -v13')
        for r in range(16): a(f'v_exp_f32 v{16+r}, v{16+r}')
        for r in range(8): a(f'v_cvt_pk_bf16_f32 v{128+r}, v{16+2*r}, v{17+2*r}')
        a(f'''v_lshlrev_b32 v8, 4, v1
        s_lshl_b32 s38, s33, 11
        s_add_u32 s38, s38, {PB}
        v_add_u32 v8, s38, v8
        ds_write_b128 v8, v[128:131]
        ds_write_b128 v8, v[132:135] offset:1024''')
        for k in (8, 4, 2, 1):
            for r in range(k): a(f'v_add_f32 v{16+r}, v{16+r}, v{16+k+r}')
        a(f'''v_mov_b32 v14, v16
        v_permlane32_swap_b32 v16, v14
        v_add_f32 v16, v16, v14
        v_add_u32 v12, {LB - SYNC}, v12
        ds_write_b32 v12, v16''')
        self.sig(C_P, 14)
        self.stamp(5)
        for i in range(32):
            kt, u, ct = i >> 3, (i >> 2) & 1, i & 3
            if i == 4:
                self.wait(C_P, 4, 14)
                for k in range(1, 4):
                    a(f'v_xor_b32 v15, {k*2048}, v8')
                    a(f'ds_read_b128 v[{128+8*k}:{131+8*k}], v15')
                    a(f'ds_read_b128 v[{132+8*k}:{135+8*k}], v15 offset:1024')
                a(f'v_add_u32 v11, {LB - SYNC}, v11')
                a('ds_read_b128 v[16:19], v11')
            if i + DV - 1 < 32: rv(i + DV - 1)
            out = 2*(min(i+DV, 32) - (i+1))
            if i < 4: out = min(out, 2*(i+1))
            if 4 <= i < 8: out = 15
            if out < 15: a(f's_waitcnt lgkmcnt({out})')
            B = 32 + 4*(i % 8); P = 128 + 8*kt + 4*u; A = 64 + 16*ct
            a(f'v_mfma_f32_32x32x16_bf16 v[{A}:{A+15}], v[{P}:{P+3}], v[{B}:{B+3}], ' + ('0' if i < 4 else f'v[{A}:{A+15}]'))
        self.trig(1, 14)
        self.stamp(6)
        a(f'''
        v_add_f32 v16, v16, v17
        v_add_f32 v18, v18, v19
        v_add_f32 v14, v16, v18            ; v13 = m, v14 = l
        v_bfe_u32 v2, v1, 4, 1
        v_lshl_add_u32 v2, v10, 2, v2
        v_lshlrev_b32 v2, 15, v2
        v_and_b32 v3, 15, v1
        v_lshl_add_u32 v2, v3, 4, v2
        s_lshl_b32 s48, s96, 20
        s_lshl_b32 s38, s97, 10
        s_add_u32 s48, s48, s38
        s_lshl_b32 s38, s33, 8
        s_add_u32 s48, s48, s38
        s_add_u32 s48, s48, {PART}
        ''')
        for k in range(8):
            r = 2*k; T = 128 + 4*k
            a(f'''v_cvt_pk_bf16_f32 v{T}, v{64+r}, v{80+r}
            v_cvt_pk_bf16_f32 v{T+1}, v{65+r}, v{81+r}
            v_cvt_pk_bf16_f32 v{T+2}, v{96+r}, v{112+r}
            v_cvt_pk_bf16_f32 v{T+3}, v{97+r}, v{113+r}
            s_add_u32 s38, s48, {((r & 3) + 8*(r >> 2)) << 15}
            v_permlane16_swap_b32 v{T}, v{T+1}
            v_permlane16_swap_b32 v{T+2}, v{T+3}
            buffer_store_dwordx4 v[{T}:{T+3}], v2, s[40:43], s38 offen sc1''')
        self.trig(2, 16)
        if o['fr'] == 0: self.sig(C_FR, 16)
        a(f'''
        v_mov_b32 v12, v13
        v_mov_b32 v13, v14
        v_lshlrev_b32 v4, 3, v9
        s_lshl_b32 s38, s33, 8
        s_add_u32 s49, s61, s38
        s_add_u32 s49, s49, {STAT}
        v_lshrrev_b32 v6, 4, v1            ; g
        v_lshlrev_b32 v7, 13, v6
        v_lshl_add_u32 v7, v3, 4, v7
        ''')
        self.slotmasks(20, 1, 16)
        a(f'''
        s_waitcnt vmcnt(0)
        s_mov_b32 exec_hi, 0
        buffer_store_dwordx2 v[12:13], v4, s[40:43], s49 offen sc1
        s_mov_b64 exec, -1
        ''')
        self.stamp(7)
        self.trig(3, 16)
        if o['fr'] == 1: self.sig(C_FR, 16)
        a(f'''
        v_bfe_u32 v12, v1, 2, 2            ; r'
        v_lshl_add_u32 v13, v6, 3, v12     ; 8g + r'
        v_lshrrev_b32 v14, 1, v12
        v_and_b32 v15, 1, v6
        v_lshl_or_b32 v14, v15, 1, v14     ; f1
        v_lshlrev_b32 v14, 5, v14
        v_lshl_add_u32 v14, v13, 7, v14
        v_and_b32 v16, 3, v1
        v_lshl_add_u32 v14, v16, 3, v14
        s_lshl_b32 s38, s33, 14
        v_add_u32 v160, s38, v14
        v_xor_b32 v161, 32, v160
        v_xor_b32 v162, 64, v160
        v_xor_b32 v163, 0x60, v160
        v_lshl_or_b32 v14, v15, 2, v12     ; f2
        v_lshlrev_b32 v14, 5, v14
        v_lshl_add_u32 v14, v13, 8, v14
        v_lshl_add_u32 v14, v16, 3, v14
        s_add_u32 s38, s38, 65536
        v_add_u32 v2, s38, v14
        ''')
        a('s_cmp_lt_u32 s34, 4\ns_cbranch_scc1 L_A_fw')
        a(f'''L_A_st:
        v_lshlrev_b32 v5, 10, v9
        s_and_b32 s38, s34, 3
        s_lshl_b32 s38, s38, 8
        s_add_u32 s39, s33, 4
        s_lshl_b32 s50, s39, 15
        s_add_u32 s50, s50, s38
        s_lshl_b32 s51, s35, 3
        s_add_u32 s50, s50, s51
        s_add_u32 s50, s50, {STAT}
        s_lshl_b32 s51, s39, 5
        s_add_u32 s51, s51, s35
        s_lshl_b32 s51, s51, 15
        s_add_u32 s51, s51, s38
        s_add_u32 s51, s51, {PART}
        s_lshl_b32 s38, s33, 8
        s_add_u32 s38, s38, {COEF}
        v_lshl_add_u32 v24, v1, 2, s38
        v_bfe_u32 v16, v1, 3, 1
        v_lshlrev_b32 v16, 7, v16
        v_lshl_add_u32 v16, v6, 5, v16
        v_add_u32 v25, s38, v16
        v_bfe_u32 v16, v1, 4, 1
        v_lshlrev_b32 v16, 4, v16
        v_lshl_add_u32 v16, v3, 5, v16
        v_lshl_add_u32 v16, v10, 3, v16    ; 4*pos
        s_mul_i32 s38, s33, {2*RS}
        s_add_u32 s38, s38, {CLB + 8*RS}
        v_add_u32 v26, s38, v16
        s_mov_b32 s53, 0''')
        nwl = 2*(o['tuv'] < 6) + 2*(o['two'] < 6) + (o['tmo'] < 6)
        if o['wl'] and nwl: self.wait(C_WL, nwl, 12, sleep=1)
        a(f'''L_A_st1:
        buffer_load_dwordx2 v[12:13], v5, s[40:43], s50 offen sc1''')
        self.budget()
        a(f'''L_A_st4:
        s_add_u32 s52, s51, 4096
        s_waitcnt vmcnt(0)
        v_cmp_eq_u32 vcc, -1, v13
        s_cbranch_vccz L_A_st3
        s_mov_b64 exec, vcc''')
        if o['ps']: a(f's_sleep {o["ps"]}')
        a('s_branch L_A_st1\nL_A_st3:\ns_mov_b64 exec, -1')
        self.stamp(8)
        for t in range(8):
            a(f'buffer_load_dwordx4 v[{32+4*t}:{35+4*t}], v7, s[40:43], s{51+(t>>2)} offen offset:{(t&3)*1024} sc1')
        a(f's_sub_u32 s50, s50, {4 << 15}\ns_max_i32 s38, s50, {STAT}\nbuffer_load_dwordx2 v[96:97], v5, s[40:43], s38 offen sc1')
        a('v_mov_b32 v14, v12')
        self.red32('v_max_f32', 14, 15)
        a(f'''v_sub_f32 v12, v12, v14
        v_exp_f32 v12, v12
        v_mul_f32 v14, v12, v13''')
        self.red32('v_add_f32', 14, 15)
        a(f'''v_rcp_f32 v14, v14
        v_cmp_gt_u32 vcc, 32, v1
        v_mul_f32 v12, v12, v14
        v_cvt_pk_bf16_f32 v13, v12, v12
        v_and_b32 v14, 0xffff0000, v13
        v_sub_f32 v12, v12, v14
        v_cvt_pk_bf16_f32 v12, v12, v12
        v_cndmask_b32 v12, v12, v13, vcc
        ds_write_b32 v24, v12
        ds_read_b128 v[12:15], v25
        ds_read_b128 v[16:19], v25 offset:16
        s_waitcnt lgkmcnt(0)''')
        for t in range(8):
            for i in range(4): a(f'v_and_b32 v{64+4*t+i}, v{12+t}, v{20+i}')
        for t in range(8):
            a(f's_waitcnt vmcnt({8-t})')
            a(f'v_mfma_f32_16x16x32_bf16 v[28:31], v[{64+4*t}:{67+4*t}], v[{32+4*t}:{35+4*t}], ' + ('0' if t == 0 else 'v[28:31]'))
        a(f'''s_sub_u32 s51, s51, {4 << 20}
        v_mov_b32 v16, 1
        s_add_u32 s53, s53, 1
        v_permlane32_swap_b32 v28, v30
        v_permlane32_swap_b32 v29, v31
        v_add_f32 v28, v28, v30
        v_add_f32 v29, v29, v31
        v_cvt_pk_bf16_f32 v12, v28, 0
        v_cvt_pk_bf16_f32 v13, v29, 0
        v_cvt_pk_bf16_f32 v14, 0, v28
        v_cvt_pk_bf16_f32 v15, 0, v29
        ds_write2_b64 v26, v[12:13], v[14:15] offset0:0 offset1:{RS//8}
        s_mov_b64 exec, 1
        ds_add_u32 v0, v16 offset:{C_CL}
        s_mov_b64 exec, -1
        v_subrev_u32 v26, {8*RS}, v26
        s_cmp_eq_u32 s53, 1
        s_cbranch_scc0 L_A_st2''')
        self.stamp(13)
        a('s_waitcnt lgkmcnt(0) vmcnt(0)\nv_mov_b32 v12, v96\nv_mov_b32 v13, v97\ns_branch L_A_st4\nL_A_st2:')
        self.stamp(9)
        a('''s_cmp_lg_u32 s35, s33
        s_cbranch_scc1 L_end
        s_branch L_A_F
        L_A_fw:
        s_cmp_ge_u32 s35, 28
        s_cbranch_scc1 L_end''')
        self.wait(C_FFW, 4, 12, sleep=1)
        self.stamp(8)
        self.w1_read((0, 1), 96)
        a('L_A_F:')
        self.srd(44, 4, 8192)
        a(f'''
        v_bfe_u32 v17, v1, 3, 1
        v_cmp_eq_u32 vcc, v17, v10
        v_mov_b32 v12, 0x3f803f80
        v_cndmask_b32 v12, 0, v12, vcc
        v_and_b32 v20, v12, v20
        v_and_b32 v21, v12, v21
        v_and_b32 v22, v12, v22
        v_and_b32 v23, v12, v23
        v_and_b32 v12, 1, v6
        v_lshlrev_b32 v13, 3, v12
        v_lshl_add_u32 v13, v3, 4, v13
        v_lshl_add_u32 v16, v10, 12, v13
        s_and_b32 s62, s34, 3              ; p
        s_lshl_b32 s38, s62, 10
        s_lshl_b32 s39, s33, 8
        s_add_u32 s48, s38, s39
        buffer_load_dwordx2 v[128:129], v16, s[44:47], s48 offen
        L_A_md:
        s_add_u32 s49, s48, {MOD}''')
        for k in range(16):
            a(f'buffer_load_dwordx2 v[{32+2*k}:{33+2*k}], v16, s[40:43], s49 offen sc1')
            if k < 15: a('s_add_u32 s49, s49, 8192')
        self.budget()
        a('s_waitcnt vmcnt(0)')
        self.check(32, 32, 15)
        a('s_cbranch_vccz L_A_md1\ns_sleep 4\ns_branch L_A_md\nL_A_md1:')
        for i in range(2):
            a(f'v_lshlrev_b32 v{140+2*i}, 16, v{128+i}\nv_and_b32 v{141+2*i}, 0xffff0000, v{128+i}')
        for k in range(4):
            for q in range(4):
                for i in range(2):
                    src = 32 + 8*k + 2*q + i; d = 144 + 4*k + 2*i
                    if q == 0: a(f'v_lshlrev_b32 v{d}, 16, v{src}\nv_and_b32 v{d+1}, 0xffff0000, v{src}')
                    else: a(f'v_lshlrev_b32 v14, 16, v{src}\nv_and_b32 v15, 0xffff0000, v{src}\nv_pk_add_f32 v[{d}:{d+1}], v[{d}:{d+1}], v[14:15]')
        for i in range(4): a(f'v_add_f32 v{152+i}, 1.0, v{152+i}')
        a(f'''
        s_lshl_b32 s53, s62, 15
        s_add_u32 s53, s53, s39
        s_add_u32 s56, s53, {OUTP}
        s_add_u32 s53, s53, {YP}
        s_and_b32 s38, s35, 24
        s_lshl_b32 s38, s38, 9
        s_add_u32 s56, s56, s38
        s_xor_b32 s57, s56, 4096
        s_xor_b32 s58, s56, 8192
        s_xor_b32 s59, s56, 12288
        v_lshlrev_b32 v5, 17, v10
        v_lshl_add_u32 v5, v3, 4, v5
        v_lshl_add_u32 v7, v12, 14, v5
        s_add_u32 s38, s39, {H2B}
        v_lshl_add_u32 v24, v10, 10, v13
        v_add_u32 v24, s38, v24            ; h2 write
        v_lshlrev_b32 v15, 10, v17
        v_lshl_add_u32 v16, v6, 4, v15
        v_add_u32 v25, s38, v16            ; h2 read
        s_add_u32 s38, s39, {UB}
        v_add_u32 v27, s38, v16            ; u write
        s_lshl_b32 s38, s33, 2
        s_add_u32 s38, s38, {LNB}
        v_lshl_add_u32 v26, v6, 4, s38
        v_lshlrev_b32 v8, 5, v10
        v_add_u32 v8, {LNB}, v8
        v_bfe_u32 v16, v1, 2, 1            ; hf
        v_lshl_add_u32 v15, v16, 9, v15
        v_mul_u32_u24 v16, 3, v16
        v_xor_b32 v16, v16, v1
        v_bfe_u32 v18, v16, 1, 1
        v_lshl_add_u32 v15, v18, 7, v15
        v_and_b32 v18, 1, v16
        v_lshl_add_u32 v15, v18, 4, v15
        v_lshl_add_u32 v15, v6, 5, v15
        v_add_u32 v4, {UB}, v15            ; u read
        s_lshl_b32 s60, s33, 15
        s_add_u32 s60, s60, {YP + 28*1024}
        v_lshlrev_b32 v13, 7, v9''')
        self.stamp(9) if False else None
        if self.dbg: a('s_cmp_ge_u32 s34, 4\ns_cbranch_scc1 L_A_hint0'); self.stamp(9); a('L_A_hint0:')
        a('s_mov_b32 exec_hi, 0\nL_A_hint1:\nbuffer_load_dword v12, v13, s[40:43], s60 offen sc1')
        self.budget()
        a('''s_waitcnt vmcnt(0)
        v_cmp_eq_u32 vcc, -1, v12
        s_mov_b64 exec, vcc
        s_cbranch_vccnz L_A_hint1
        s_mov_b64 exec, -1''')
        self.stamp(10)
        self.gsum('h4', 16, lambda t: f's{56+(t>>2)}', True)
        self.stamp(11)
        for i in range(4): a(f'v_fma_f32 v{28+i}, v{28+i}, v{144+i}, v{140+i}')
        a('s_cmp_ge_u32 s34, 4\ns_cbranch_scc1 L_A_fin')
        self.w1_read((2,), 64, final=False)
        a(f'''
        v_add_f32 v12, v28, v29
        v_mul_f32 v13, v28, v28
        v_add_f32 v14, v30, v31
        v_fmac_f32 v13, v29, v29
        v_add_f32 v12, v12, v14
        v_fmac_f32 v13, v30, v30
        v_fmac_f32 v13, v31, v31
        v_permlane16_swap_b32 v12, v13
        v_add_f32 v12, v12, v13''')
        for m in ('quad_perm:[1,0,3,2]', 'quad_perm:[2,3,0,1]', 'row_half_mirror', 'row_mirror'):
            a(f'v_add_f32_dpp v12, v12, v12 {m} {DPPF}')
        a('ds_write_b32 v26, v12')
        self.w1_read((3,), 80, final=False)
        a(f'''L_A_ln:
        ds_read_b128 v[12:15], v8
        ds_read_b128 v[16:19], v8 offset:16''')
        self.budget()
        a('s_waitcnt lgkmcnt(0)')
        self.check(12, 8, 32)
        a(f'''s_cbranch_vccnz L_A_ln
        v_add_f32 v12, v12, v13
        v_add_f32 v16, v16, v17
        v_add_f32 v14, v14, v15
        v_add_f32 v18, v18, v19
        s_mov_b32 s38, {f32(1/512)}
        v_add_f32 v12, v12, v14
        v_add_f32 v16, v16, v18
        v_mul_f32 v12, s38, v12
        v_mul_f32 v16, s38, v16
        v_fma_f32 v16, -v12, v12, v16
        v_max_f32 v16, 0, v16
        v_add_f32 v16, {f32(1e-5)}, v16
        v_rsq_f32 v16, v16''')
        for i in range(4): a(f'v_sub_f32 v{28+i}, v{28+i}, v12')
        for i in range(4): a(f'v_mul_f32 v{152+i}, v{152+i}, v16')
        for i in range(4): a(f'v_fma_f32 v{28+i}, v{28+i}, v{152+i}, v{148+i}')
        a(f'''v_cvt_pk_bf16_f32 v28, v28, v29
        v_cvt_pk_bf16_f32 v29, v30, v31
        ds_write_b64 v24, v[28:29]''')
        for s in range(4): a(f'ds_read_b128 v[{128+4*s}:{131+4*s}], v25 offset:{64*s}')
        for T in range(1, 8): a(f'v_xor_b32 v{12+T}, {32*T}, v2')
        for s in range(4):
            a(f's_waitcnt lgkmcnt({3-s})')
            for T in range(4):
                B = 64 + 16*(s^2) + 4*T
                a(f'v_mfma_f32_16x16x32_bf16 v[{32+4*T}:{35+4*T}], v[{B}:{B+3}], v[{128+4*s}:{131+4*s}], ' + ('0' if s == 0 else f'v[{32+4*T}:{35+4*T}]'))
        def w2rd(s, T):
            B = 64 + 32*(s^1) + 4*T; ad = 2 if T == 0 else 12 + T
            a(f'ds_read_b64_tr_b16 v[{B}:{B+1}], v{ad} offset:{s*8192}')
            a(f'ds_read_b64_tr_b16 v[{B+2}:{B+3}], v{ad} offset:{s*8192+1024}')
        for T in range(4): w2rd(0, T)
        a('s_mov_b32 exec_lo, 0x01010101\ns_mov_b32 exec_hi, 0x01010101')
        for T in range(4): a(f'ds_write_b128 v27, v[{32+4*T}:{35+4*T}] offset:{64*T}')
        a('s_mov_b64 exec, -1')
        self.sig(C_U, 12)
        a('s_waitcnt lgkmcnt(6)')
        for T in range(4, 8): w2rd(0, T)
        a('s_waitcnt lgkmcnt(4)')
        for T in range(4): w2rd(1, T)
        a('s_waitcnt lgkmcnt(4)')
        for T in range(4, 8): w2rd(1, T)
        self.wait(C_U, 4, 12)
        a('ds_read_b128 v[28:31], v4\nds_read_b128 v[12:15], v4 offset:256\ns_waitcnt lgkmcnt(0)')
        for i in range(4): a(f'v_add_f32 v{28+i}, v{28+i}, v{12+i}')
        for i in range(4): a(f'v_add_f32_dpp v{28+i}, v{28+i}, v{28+i} row_half_mirror {DPPF}')
        for i in range(4): a(f'v_max_f32 v{28+i}, 0, v{28+i}')
        a('v_cvt_pk_bf16_f32 v28, v28, v29\nv_cvt_pk_bf16_f32 v29, v30, v31')
        def ub(s, h):
            for k in (2*s, 2*s+1):
                for i in range(2): a(f'v_mov_b32_dpp v{128+2*k+i}, v{28+i} row_newbcast:{k+8*h} row_mask:0xf bank_mask:{hex(3 << (2*h))}')
        ub(0, 0); ub(0, 1)
        for s in range(2):
            for T in range(8):
                B = 64 + 32*(s^1) + 4*T
                a(f'v_mfma_f32_16x16x32_bf16 v[{32+4*T}:{35+4*T}], v[{128+4*s}:{131+4*s}], v[{B}:{B+3}], ' + ('0' if s == 0 else f'v[{32+4*T}:{35+4*T}]'))
                if s == 0 and T in (0, 2): ub(1, T >> 1)
        a(f's_lshl_b32 s38, s35, 10\ns_add_u32 s38, s38, s53')
        for k in range(4): a(f'v_cvt_pk_bf16_f32 v{28+k}, v{32+8*k}, v{36+8*k}')
        a(f'''s_mov_b32 exec_lo, 0xffff
        s_mov_b32 exec_hi, 0xffff
        buffer_store_dwordx4 v[28:31], v5, s[40:43], s38 offen sc1''')
        self.stamp(12)
        a('s_branch L_end')
        a('L_A_fin:')
        self.srd(44, 26, 8192)
        a(f'''
        v_and_b32 v12, 7, v1
        v_lshlrev_b32 v13, 1, v12
        v_lshrrev_b32 v14, 1, v6
        v_add_u32 v13, v13, v14
        v_and_b32 v14, 1, v6
        v_lshl_add_u32 v13, v14, 4, v13
        v_lshl_add_u32 v13, v17, 5, v13
        v_lshlrev_b32 v13, 2, v13''')
        for i in range(4):
            a(f'ds_bpermute_b32 v{140+i}, v13, v{28+i}\nds_bpermute_b32 v{144+i}, v13, v{156+i}')
        a(f'''
        v_lshlrev_b32 v4, 5, v12
        v_lshl_add_u32 v4, v6, 3, v4
        v_lshl_add_u32 v4, v17, 12, v4
        v_mul_u32_u24 v7, {14*1024}, v14
        v_add_u32 v7, v7, v5
        s_mov_b32 s56, s53
        s_add_u32 s57, s53, 4096
        s_add_u32 s58, s53, 8192
        s_add_u32 s59, s53, 12288
        s_waitcnt lgkmcnt(0)''')
        self.gsum('h5', 14, lambda t: f's{56+(t>>2)}', False)
        self.stamp(12)
        for i in range(4): a(f'v_fma_f32 v{28+i}, v{28+i}, v{144+i}, v{140+i}')
        a(f'''v_cvt_pk_bf16_f32 v28, v28, v29
        v_cvt_pk_bf16_f32 v29, v30, v31
        buffer_store_dwordx2 v[28:29], v4, s[44:47], s48 offen''')
        a('s_branch L_end')

    def gsum(self, tag, n, so, flip):
        a = self.a
        def ld(t): a(f'buffer_load_dwordx4 v[{32+4*t}:{35+4*t}], v7, s[40:43], {so(t)} offen offset:{(t&3)*1024} sc1')
        for t in range(n): ld(t)
        G = [list(range(k, min(k+4, n))) for k in range(0, n, 4)]
        for gi, g in enumerate(G):
            a(f's_waitcnt vmcnt({n-1-g[-1]})\nL_{tag}_c{gi}:')
            self.check(32+4*g[0], 4*len(g), 12)
            a(f's_cbranch_vccnz L_{tag}_r{gi}')
            for t in g:
                x, y = 'v[20:23]', f'v[{32+4*t}:{35+4*t}]'
                if not flip: x, y = y, x
                a(f'v_mfma_f32_16x16x32_bf16 v[28:31], {x}, {y}, ' + ('0' if t == 0 else 'v[28:31]'))
        self.cold.append((tag, G, ld, n))

    def w1_dma(self, stride, tag, base=0, nt=None):
        a = self.a; o = self.o
        a(f'''
        v_mul_u32_u24 v12, {stride}, v165
        v_add_u32 v12, v12, v164
        v_xor_b32 v13, 64, v12
        s_mul_i32 s38, s33, {128*stride}
        s_add_u32 s58, s58, s38
        s_lshl_b32 s57, s33, 14
        s_add_u32 s57, s57, {base}
        s_and_b32 s56, s34, 3
        s_mov_b32 s59, 0
        L_A_{tag}:
        s_xor_b32 s38, s59, s56
        s_lshl_b32 s39, s38, 12
        s_add_u32 s39, s39, s57
        s_mul_i32 s38, s38, {32*stride}
        s_add_u32 s38, s38, s58''')
        for i in range(4):
            a(f'''s_add_u32 m0, s39, {i*1024}
            s_add_u32 s60, s38, {i*8*stride}
            buffer_load_dwordx4 v{12+(i&1)}, s[44:47], s60 offen{o['nt_w'] if nt is None else nt} lds
            s_waitcnt vmcnt({o['thr_f']})''')
        a(f'''s_add_u32 s59, s59, 1
        s_cmp_lt_u32 s59, 4
        s_cbranch_scc1 L_A_{tag}''')
    def w1_read(self, steps=(0, 1, 2, 3), base=64, final=True):
        a = self.a
        for k, s in enumerate(steps):
            for T in range(4):
                B = base + 16*k + 4*T
                a(f'ds_read_b64_tr_b16 v[{B}:{B+1}], v{160+T} offset:{s*4096}')
                a(f'ds_read_b64_tr_b16 v[{B+2}:{B+3}], v{160+T} offset:{s*4096+512}')
            if k + 1 < len(steps): a('s_waitcnt lgkmcnt(6)')
            elif final: a('s_waitcnt lgkmcnt(0)')

    def groupB(self):
        a = self.a; o = self.o
        for tag, G, ld, n in self.cold:
            for gi, g in enumerate(G):
                a(f'L_{tag}_r{gi}:')
                for t in (range(g[0], n) if o['ga'] else g): ld(t)
                self.budget()
                a(f's_waitcnt vmcnt({n-1-g[-1] if o["ga"] else 0})\ns_branch L_{tag}_c{gi}')
        W = 40
        a('L_Bc:')
        self.stamp(11)
        a(f'''
        s_lshl_b32 s48, s33, 20
        s_lshl_b32 s38, s35, 8
        s_add_u32 s48, s48, s38
        s_and_b32 s49, s34, 3              ; rot
        v_lshrrev_b32 v4, 4, v1
        v_and_b32 v5, 15, v1
        v_lshlrev_b32 v2, 18, v4
        v_lshl_add_u32 v2, v5, 4, v2
        s_waitcnt lgkmcnt(0)''')
        self.srd(44, 8, 4194304)
        for u in range(4):
            a(f's_xor_b32 s38, s49, {u}\ns_lshl_b32 s38, s38, 16\ns_add_u32 s38, s38, s48')
            for k in range(8):
                r = W + 32*u + 4*k
                a(f'buffer_load_dwordx4 v[{r}:{r+3}], v2, s[44:47], s38 offen{o["nt_w"]}')
                if k < 7: a('s_add_u32 s38, s38, 8192')
            if u == 0:
                self.late()
                a('s_barrier')
        self.sig(C_QK, 6)
        self.stamp(1)
        a(f'''
        v_lshrrev_b32 v5, 1, v5
        v_lshlrev_b32 v5, 4, v5
        v_lshl_add_u32 v7, v4, 9, v5
        s_lshl_b32 s38, s33, 11''')
        for u in range(4):
            a(f's_xor_b32 s{50+u}, s49, {u}\ns_lshl_b32 s{50+u}, s{50+u}, 7\ns_add_u32 s{50+u}, s{50+u}, s38')
        a(f'''
        v_and_b32 v4, 1, v1
        v_cmp_eq_u32 vcc, 1, v4
        v_mov_b32 v2, 0x0c0c0100
        v_mov_b32 v4, 0x01000c0c
        v_cndmask_b32 v2, v2, v4, vcc
        v_mov_b32 v3, 0x0c0c0302
        v_mov_b32 v4, 0x03020c0c
        v_cndmask_b32 v3, v3, v4, vcc
''')
        self.flagpoll(6, 4)
        self.stamp(2)
        def hload():
            for u in range(4): a(f'buffer_load_dwordx4 v[{8+4*u}:{11+4*u}], v7, s[40:43], s{50+u} offen sc1')
        hload()
        for t in range(8): self.swaps(W + 16*t)
        a('s_branch L_B_h1\nL_B_h0:')
        hload()
        self.budget()
        a('L_B_h1:\ns_waitcnt vmcnt(0)')
        self.check(8, 16, 24)
        a('s_cbranch_vccnz L_B_h0')
        self.sig(C_WQ, 24)
        self.stamp(3)
        def perm(t, i):
            dst = (4 if t == 0 else W + 16*(t-1)) + i
            src = 8 + 2*t + (i >> 1)
            a(f'v_perm_b32 v{dst}, v{src}, v{src}, v{2+(i&1)}')
        for i in range(4): perm(0, i)
        for t in range(8):
            op = 4 if t == 0 else W + 16*(t-1)
            for p in range(4):
                r = W + 16*t + 4*p
                a(f'v_mfma_f32_16x16x32_bf16 v[{24+4*p}:{27+4*p}], v[{r}:{r+3}], v[{op}:{op+3}], ' + ('0' if t == 0 else f'v[{24+4*p}:{27+4*p}]'))
                if t < 7 and p < 2: perm(t+1, 2*p); perm(t+1, 2*p+1)
        a(f'''s_lshl_b32 s38, s33, 12
        s_add_u32 s38, s38, {S2P}
        v_lshl_add_u32 v4, v1, 4, s38''')
        for p in range(4): a(f'ds_write_b128 v4, v[{24+4*p}:{27+4*p}] offset:{p*1024}')
        self.sig(C_S2, 5)
        self.stamp(4)
        if o['nq']:
            self.wait(C_QS, 2, 5, sleep=1)
            self.wait(C_G, 1, 5, sleep=1)
        else: self.wait(C_QP, 2, 5)
        a('s_branch L_B_e1' if o['qf'] else 's_branch L_B_qa')
        a('L_Be:')
        self.stamp(11)
        a('''s_lshl_b32 s48, s33, 20
        s_lshl_b32 s38, s35, 8
        s_add_u32 s48, s48, s38
        s_waitcnt lgkmcnt(0)
        s_cmp_eq_u32 s34, 4
        s_cbranch_scc1 L_Bs''')
        self.uk_touch('B')
        self.late()
        a('s_barrier\ns_branch L_B_e1\nL_Bs:')
        self.srd(44, 24, 3145728)
        self.pidx()
        self.late()
        a(f'''
        v_lshrrev_b32 v2, 2, v1
        v_mul_u32_u24 v4, 6144, v2
        v_lshrrev_b32 v2, 5, v1
        v_bfe_u32 v5, v1, 1, 1
        v_xor_b32 v2, v2, v5
        v_lshl_add_u32 v4, v2, 10, v4
        v_and_b32 v2, 1, v1
        v_lshl_add_u32 v4, v2, 4, v4
        s_mul_i32 s58, s33, {128*6144}
        s_lshl_b32 s39, s55, 5
        s_add_u32 s58, s58, s39
        s_lshl_b32 s59, s33, 13
        s_add_u32 m0, s59, {S1W}
        s_lshl_b32 s38, s33, 2
        v_add_u32 v5, s38, v0
        s_barrier''')
        for i in range(8):
            a(f'''buffer_load_dwordx4 v4, s[44:47], s58 offen{o['nt_w']} lds
            s_add_u32 m0, m0, 1024
            s_add_u32 s58, s58, {16*6144}''')
        self.stamp(1)
        a(f'''v_mov_b32 v6, 1
        s_waitcnt vmcnt(0)
        ds_write_b32 v5, v6 offset:{F_S1W}''')
        self.sig(C_QK, 6)
        a('L_B_e1:')
        self.flagpoll(6, 4, off=128, sleep=4)
        self.stamp(2)
        a(f'''L_B_qa:
        v_lshlrev_b32 v2, 4, v1
        s_lshl_b32 s50, s96, 15
        s_lshl_b32 s38, s33, 13
        s_add_u32 s50, s50, s38
        s_add_u32 s50, s50, {QL}
        s_add_u32 s51, s50, 4096
        s_mul_i32 s38, s33, {8*QROW}
        s_add_u32 s38, s38, {QR}
        v_add_u32 v3, s38, v2
''')
        self.stamp(5)
        if o['qp']: a('s_setprio 2')
        if self.dbg: a('s_mov_b32 s99, s3')
        def qld(t): a(f'buffer_load_dwordx4 v[{W+4*t}:{W+3+4*t}], v2, s[40:43], s{50+(t>>2)} offen offset:{(t&3)*1024} sc1')
        for t in range(8): qld(t)
        a('s_mov_b32 s56, -1\ns_mov_b32 s57, 0x3fffffff')
        for t in range(8):
            a(f's_waitcnt vmcnt({7-t})\nL_B_qc{t}:')
            self.check(W+4*t, 4, 5)
            a(f'''s_cbranch_vccnz L_B_qr{t}
            s_mov_b64 exec, s[56:57]
            ds_write_b128 v3, v[{W+4*t}:{W+3+4*t}] offset:{t*QROW}
            s_mov_b64 exec, -1''')
        a('s_branch L_B_qd')
        for t in range(8):
            a(f'L_B_qr{t}:')
            for u in range(t, 8):
                if u == t or o['qa']: qld(u)
            self.budget()
            a(f's_waitcnt vmcnt(0)\ns_branch L_B_qc{t}')
        a('L_B_qd:\ns_setprio 0')
        if self.dbg: a('s_sub_u32 s99, s99, s3\ns_mul_i32 s99, s99, 100\ns_add_u32 s80, s64, s99')
        self.sig(C_Q, 5)
        self.stamp(6)
        a(f'''s_cmp_lt_u32 s34, 4
        s_cbranch_scc1 L_end
''')
        a('s_cmp_lt_u32 s33, 2\ns_cbranch_scc1 L_B_uv\ns_cmp_eq_u32 s33, 3\ns_cbranch_scc1 L_end')
        self.srd(44, 22, 8192)
        a(f'''
        v_lshrrev_b32 v4, 4, v1
        v_and_b32 v5, 15, v1
        v_lshrrev_b32 v2, 1, v5
        v_lshlrev_b32 v2, 10, v2
        v_lshl_add_u32 v2, v4, 6, v2
        s_and_b32 s62, s34, 3
        s_lshl_b32 s38, s62, 8''')
        for u in range(4): a(f'buffer_load_dwordx4 v[{8+4*u}:{11+4*u}], v2, s[44:47], s38 offen offset:{16*u}')
        self.srd(44, 24, 3145728)
        a(f'''
        v_mul_u32_u24 v2, {32*6144}, v4
        v_lshl_add_u32 v2, v5, 3, v2
        v_lshlrev_b32 v4, 11, v4
        v_lshl_add_u32 v4, v5, 3, v4
        v_and_b32 v3, 1, v1
        v_lshlrev_b32 v3, 4, v3
        s_mov_b32 s38, 0xffff
        v_lshlrev_b32 v3, v3, s38
        s_mul_i32 s48, s62, {128*6144}
        s_lshl_b32 s38, s35, 7
        s_add_u32 s48, s48, s38
        s_add_u32 s48, s48, 2048
        s_lshl2_add_u32 s49, s37, s62
        s_lshl_b32 s49, s49, 13
        s_lshl_b32 s38, s36, 7
        s_add_u32 s49, s49, s38
        s_add_u32 s49, s49, {MOD}
        s_mov_b32 s38, {f32(-math.log2(math.e))}
        s_waitcnt vmcnt(0)''')
        for k in range(16):
            a(f'''v_lshlrev_b32 v24, 16, v{8+k}
            v_and_b32 v25, 0xffff0000, v{8+k}
            v_mul_f32 v26, s38, v24
            v_mul_f32 v27, s38, v25
            v_exp_f32 v26, v26
            v_exp_f32 v27, v27
            v_add_f32 v26, 1.0, v26
            v_add_f32 v27, 1.0, v27
            v_rcp_f32 v26, v26
            v_rcp_f32 v27, v27
            v_mul_f32 v24, v24, v26
            v_mul_f32 v25, v25, v27
            v_cvt_pk_bf16_f32 v24, v24, v24
            v_cvt_pk_bf16_f32 v25, v25, v25
            v_and_b32 v{40+2*k}, v24, v3
            v_and_b32 v{41+2*k}, v25, v3''')
        self.wait(C_Q, 4, 6, sleep=1)
        self.twait(o['tmo'], 6)
        self.gv_load(104, 2, lambda t, i: (4*t + i)*6144, o['thr_m'], o['tmo'] < 6)
        self.gv_run(104, 40, None, None)
        a('''buffer_store_dwordx2 v[8:9], v4, s[40:43], s49 offen sc1
        buffer_store_dwordx2 v[10:11], v4, s[40:43], s49 offen offset:1024 sc1''')
        self.stamp(13)
        a('s_branch L_end\nL_B_uv:')
        self.srd(44, 12, 4194304)
        a(f'''
        v_lshrrev_b32 v4, 4, v1
        v_and_b32 v5, 15, v1
        v_lshlrev_b32 v2, 13, v4
        v_lshl_add_u32 v2, v5, 3, v2
        s_and_b32 s62, s34, 3
        s_lshl_b32 s48, s62, 20
        s_lshl1_add_u32 s38, s35, s33
        s_lshl_b32 s38, s38, 7
        s_add_u32 s48, s48, s38
        v_mul_u32_u24 v3, {RS}, v5
        v_lshl_add_u32 v3, v4, 5, v3
        v_add_u32 v3, {CLB}, v3
        v_lshlrev_b32 v4, 4, v1
        s_lshl2_add_u32 s49, s35, s62
        s_lshl1_add_u32 s49, s49, s33
        s_lshl_b32 s49, s49, 10
        s_add_u32 s49, s49, {CTXP}''')
        self.twait(o['tuv'], 6)
        self.stamp(12)
        self.gv_load(104, 2, lambda t, i: (64*(t&1) + 32*(i&1) + 16*(i>>1) + 4*(t>>1))*8192, o['thr_b'], o['tuv'] < 6)
        self.stamp(7)
        self.wait(C_CL, 5, 6, sleep=1)
        a('s_setprio 2')
        self.wait(C_CL, 8, 6)
        self.stamp(9)
        self.gv_run(104, 40, 3, lambda t: 128*(t>>1) + 16*(t&1))
        a('buffer_store_dwordx4 v[8:11], v4, s[40:43], s49 offen sc1')
        self.stamp(10)
        if o['cxw']: a('s_waitcnt vmcnt(0)')
        self.sig(C_CX, 6)
        a('s_branch L_end')

    def gv_load(self, U, voff, rowoff, thr, wl):
        a = self.a
        for t in range(8):
            for i in range(4):
                r = U + 8*t + 2*(0, 2, 1, 3)[i]
                a(f's_add_u32 s39, s48, {rowoff(t, i)}')
                a(f'buffer_load_dwordx2 v[{r}:{r+1}], v{voff}, s[44:47], s39 offen{self.o["nt_kv"]}')
                if 4*t + i >= thr: a(f's_waitcnt vmcnt({thr})')
        if wl and self.o['wl'] == 1: self.sig(C_WL, 6)
        a('s_waitcnt vmcnt(0)')
        if wl and self.o['wl'] == 2: self.sig(C_WL, 6)
        for t in range(8): a(f'v_swap_b32 v{U+8*t+1}, v{U+8*t+4}\nv_swap_b32 v{U+8*t+3}, v{U+8*t+6}')
    def gv_run(self, U, O, rd, off):
        a = self.a
        if rd is not None:
            for t in range(8): a(f'ds_read_b128 v[{O+4*t}:{O+3+4*t}], v{rd} offset:{off(t)}')
        for t in range(8):
            if rd is not None: a(f's_waitcnt lgkmcnt({7-t})')
            for p in range(2):
                r = U + 8*t + 4*p
                a(f'v_mfma_f32_16x16x32_bf16 v[{24+4*p}:{27+4*p}], v[{O+4*t}:{O+3+4*t}], v[{r}:{r+3}], ' + ('0' if t == 0 else f'v[{24+4*p}:{27+4*p}]'))
        a('''v_cvt_pk_bf16_f32 v8, v24, v25
        v_cvt_pk_bf16_f32 v10, v26, v27
        v_cvt_pk_bf16_f32 v9, v28, v29
        v_cvt_pk_bf16_f32 v11, v30, v31''')

    def uk_touch(self, tag):
        if not self.o['ukt']: return
        self.a(f'''s_cmp_lt_u32 s34, 5
        s_cbranch_scc1 L_{tag}_nt
        s_cmp_eq_u32 s2, 40
        s_cbranch_scc1 L_{tag}_nt
        s_mul_i32 s38, s32, 3
        s_add_u32 s38, s38, s34
        s_sub_u32 s38, s38, 17
        s_cmp_ge_u32 s38, 16
        s_cbranch_scc1 L_{tag}_nt
        v_lshrrev_b32 v2, 1, v1
        v_and_b32 v3, 1, v1
        v_lshl_add_u32 v2, v2, 6, v3
        s_lshl_b32 s38, s38, 10
        s_add_u32 s38, s38, s35
        s_lshl_b32 s38, s38, 8
        v_lshl_add_u32 v2, v2, 7, s38
        global_load_dword v166, v2, s[10:11]
        L_{tag}_nt:''')

    def groupC(self):
        a = self.a; o = self.o
        W = 40
        a('L_Cs:\ns_setprio 2')
        self.stamp(11)
        a('s_waitcnt lgkmcnt(0)')
        self.srd(44, 22, 8192)
        self.silu_load(8, 2, 44)
        self.srd(44, 4, 8192)
        self.pidx()
        for i in range(16): a(f'v_mov_b32 v{24+i}, 0x3f803f80' if i == 0 else f'v_mov_b32 v{24+i}, v24')
        a(f'''
        v_and_b32 v2, 15, v1
        v_lshlrev_b32 v2, 10, v2
        v_lshrrev_b32 v3, 4, v1
        v_lshl_add_u32 v4, v3, 4, v2
        v_lshl_add_u32 v5, v3, 3, v2
        s_lshl_b32 s39, s55, 5
        s_mov_b32 s56, 0x00ff00ff
        s_mov_b32 s57, 0x00ff00ff
        s_mov_b64 exec, s[56:57]''')
        for s in range(4): a(f'buffer_load_dwordx4 v[{24+4*s}:{27+4*s}], v4, s[44:47], s38 offen offset:{64*s}')
        a(f'''buffer_load_dwordx2 v[6:7], v5, s[44:47], s39 offen
        s_mov_b64 exec, -1
        s_barrier''')
        self.stamp(12)
        self.late()
        a(f'''
        s_lshl_b32 s59, s33, 13
        s_add_u32 s59, s59, {S1W}
        v_bfe_u32 v2, v1, 2, 2
        v_lshl_add_u32 v2, v3, 3, v2
        v_lshlrev_b32 v2, 6, v2
        v_and_b32 v4, 1, v3
        v_lshl_add_u32 v2, v4, 5, v2
        v_and_b32 v4, 3, v1
        v_lshl_add_u32 v2, v4, 3, v2
        v_add_u32 v2, s59, v2
        v_xor_b32 v3, 32, v2
        s_mul_i32 s38, s33, 3072
        s_add_u32 s38, s38, {S1P}
        v_lshl_add_u32 v4, v1, 4, s38
        s_lshl_b32 s38, s33, 2
        v_add_u32 v5, s38, v0
        s_waitcnt vmcnt(0)''')
        self.stamp(1)
        for s in range(4):
            a(f'v_mfma_f32_16x16x32_bf16 v[88:91], v[{24+4*s}:{27+4*s}], v[{24+4*s}:{27+4*s}], ' + ('0' if s == 0 else 'v[88:91]'))
        self.silu_calc(8, 40, mid=lambda: (a('ds_write_b128 v4, v[88:91] offset:2048'), self.sig(C_GR, 44)))
        a(f'''v_and_b32 v92, 7, v1
        s_cmp_lg_u32 s33, 0
        s_cbranch_scc1 L_C_nln
        v_lshrrev_b32 v93, 2, v92
        v_lshl_add_u32 v93, v93, 4, v92
        v_lshlrev_b32 v93, 4, v93
        v_and_b32 v94, 3, v1
        v_lshl_add_u32 v93, v94, 2, v93
        v_add_u32 v93, {S1P + 2048}, v93   ; sumsq
        v_lshlrev_b32 v92, 4, v92
        v_add_u32 v94, {S1P + 2048 + 512}, v92
        v_lshrrev_b32 v95, 5, v1
        v_lshl_add_u32 v92, v95, 7, v92
        v_bfe_u32 v95, v1, 4, 1
        v_lshl_add_u32 v92, v95, 3, v92
        v_lshlrev_b32 v96, 16, v6
        v_and_b32 v97, 0xffff0000, v6
        v_lshlrev_b32 v98, 16, v7
        v_and_b32 v99, 0xffff0000, v7
        s_lshl_b32 s39, s55, 8''')
        self.wait(C_GR, 4, 40)
        for w in range(4):
            a(f'ds_read_b32 v{24+w}, v94 offset:{w*3072}\nds_read_b32 v{28+w}, v93 offset:{w*3072}')
        a(f'''s_mov_b32 s38, {f32(1/512)}
        s_waitcnt lgkmcnt(0)
        v_add_f32 v24, v24, v25
        v_add_f32 v28, v28, v29
        v_add_f32 v26, v26, v27
        v_add_f32 v30, v30, v31
        v_add_f32 v24, v24, v26
        v_add_f32 v28, v28, v30
        v_mul_f32 v24, s38, v24
        v_mul_f32 v28, s38, v28
        v_fma_f32 v28, -v24, v24, v28
        v_max_f32 v28, 0, v28
        v_add_f32 v28, {f32(1e-5)}, v28
        v_rsq_f32 v28, v28''')
        for i in range(4): a(f'v_sub_f32 v{96+i}, v{96+i}, v24')
        for i in range(4): a(f'v_mul_f32 v{96+i}, v{96+i}, v28')
        a('L_C_nln:')
        self.stamp(13)
        self.wait(F_S1W, 1, 40, addr='v5')
        self.stamp(2)
        for s in range(4):
            for u in range(2):
                B = 48 + 8*s + 4*u
                a(f'ds_read_b64_tr_b16 v[{B}:{B+1}], v{2+u} offset:{s*2048}')
                a(f'ds_read_b64_tr_b16 v[{B+2}:{B+3}], v{2+u} offset:{s*2048+256}')
            if s == 2: a('s_waitcnt lgkmcnt(8)')
        for s in range(4):
            a(f's_waitcnt lgkmcnt({12-4*s})')
            for u in range(2):
                B = 48 + 8*s + 4*u
                a(f'v_mfma_f32_16x16x32_bf16 v[{80+4*u}:{83+4*u}], v[{B}:{B+3}], v[{8+4*s}:{11+4*s}], ' + ('0' if s == 0 else f'v[{80+4*u}:{83+4*u}]'))
        a('s_cmp_eq_u32 s33, 0\ns_cbranch_scc1 L_C_red')
        for u in range(2): a(f'ds_write_b128 v4, v[{80+4*u}:{83+4*u}] offset:{u*1024}')
        self.sig(C_S1, 5)
        a('s_branch L_C_nl\nL_C_red:')
        self.wait(C_S1, 3, 5)
        for w in range(1, 4):
            for u in range(2): a(f'ds_read_b128 v[{40+8*w+4*u}:{43+8*w+4*u}], v4 offset:{w*3072+u*1024}')
        a(f'ds_read_b32 v5, v0 offset:{C_CLR}')
        for i in range(4): a(f'v_add_f32 v{80+i}, v{80+i}, v{96+i}')
        a('s_waitcnt lgkmcnt(0)')
        for r in range(0, 8, 2): a(f'v_pk_add_f32 v[{80+r}:{81+r}], v[{80+r}:{81+r}], v[{48+r}:{49+r}]\nv_pk_add_f32 v[{56+r}:{57+r}], v[{56+r}:{57+r}], v[{64+r}:{65+r}]')
        for r in range(0, 8, 2): a(f'v_pk_add_f32 v[{80+r}:{81+r}], v[{80+r}:{81+r}], v[{56+r}:{57+r}]')
        a('v_cmp_eq_u32 vcc, 0, v5')
        for i in range(4): a(f'v_fmac_f32 v{80+i}, v{84+i}, v{96+i}')
        a(f'''v_cvt_pk_bf16_f32 v80, v80, v81
        v_cvt_pk_bf16_f32 v81, v82, v83
        s_cbranch_vccz L_C_pub''')
        self.wait(C_CLR, 1, 5)
        a(f'''L_C_pub:
        s_mov_b64 exec, s[56:57]
        buffer_store_dwordx2 v[80:81], v92, s[40:43], s39 offen sc1
        s_mov_b64 exec, -1
        v_mov_b32 v5, 4
        ds_write_b32 v0, v5 offset:{C_WQ}''')
        self.stamp(3)
        a('s_branch L_C_nl\nL_Co:\ns_waitcnt lgkmcnt(0)')
        self.uk_touch('C')
        self.late()
        a('s_barrier')
        a('''s_cmp_ge_u32 s34, 4
        s_cbranch_scc1 L_C_nl
        s_cmp_lt_u32 s33, 2
        s_cbranch_scc1 L_C_s3
        L_C_nl:''')
        self.sig(C_LATE, 5)
        a('s_branch L_C_t\nL_C_s3:')
        if not o['ukl']: a('s_setprio 2')
        self.srd(44, 10, 4194304)
        a(f'''
        v_lshrrev_b32 v3, 4, v1
        v_and_b32 v2, 15, v1
        v_xor_b32 v4, v2, v3
        v_lshlrev_b32 v4, 4, v4
        v_lshl_add_u32 v4, v3, 13, v4
        v_xor_b32 v5, 64, v4
        v_xor_b32 v6, 0x80, v4
        v_xor_b32 v7, 0xc0, v4
        s_lshl_b32 s63, s34, 1
        s_add_u32 s63, s63, s33            ; cs
        s_lshl_b32 s48, s63, 19
        s_lshl_b32 s38, s35, 8
        s_add_u32 s48, s48, s38
        s_lshl_b32 s51, s33, 14
        s_add_u32 s51, s51, {WUK}
        v_lshlrev_b32 v12, 4, v1
        v_mov_b32 v8, -1
        v_mov_b32 v9, -1
        v_mov_b32 v10, -1
        v_mov_b32 v11, -1
        s_lshl_b32 s52, s33, 17
        s_add_u32 s52, s52, s54
        s_add_u32 s38, s52, {STAT}
        buffer_store_dwordx4 v[8:11], v12, s[40:43], s38 offen sc1
        s_add_u32 s38, s52, {OUTP}
        buffer_store_dwordx4 v[8:11], v12, s[40:43], s38 offen sc1
        s_add_u32 s38, s52, {YP}
        buffer_store_dwordx4 v[8:11], v12, s[40:43], s38 offen sc1
        s_lshl3_add_u32 s38, s35, s63
        s_lshl_b32 s38, s38, 10
        s_add_u32 s38, s38, {CTXP}
        buffer_store_dwordx4 v[8:11], v12, s[40:43], s38 offen sc1
        s_cmp_lg_u32 s33, 1
        s_cbranch_scc1 L_C_nm
        s_add_u32 s38, s54, {MOD}
        buffer_store_dwordx4 v[8:11], v12, s[40:43], s38 offen sc1
        L_C_nm:''')
        if o['ukl']: self.wait(C_QK, 4, 13, sleep=1)
        for i in range(16):
            T = i >> 2
            a(f'''s_add_u32 m0, s51, {i*1024}
            s_add_u32 s38, s48, {(16*(i&3) + 8*(T>>1) + 4*(T&1))*8192}
            buffer_load_dwordx4 v{4+(i&3)}, s[44:47], s38 offen{o['nt_kv']} lds''')
        self.sig(C_UK, 13)
        a(f'''
        v_lshlrev_b32 v4, 2, v3
        v_xor_b32 v4, v4, v2
        v_lshlrev_b32 v4, 4, v4
        v_lshl_add_u32 v4, v2, 8, v4
        v_add_u32 v4, s51, v4
        v_xor_b32 v5, 16, v4
        v_xor_b32 v6, 32, v4
        v_xor_b32 v7, 48, v4
        v_add_u32 v12, {S2P}, v12
        v_and_b32 v13, 1, v1
        v_lshlrev_b32 v14, 4, v13
        v_lshl_add_u32 v15, v3, 5, v14
        v_lshrrev_b32 v2, 1, v2
        v_lshl_add_u32 v15, v2, 15, v15
        s_mov_b32 s38, 0xffff
        v_lshlrev_b32 v14, v14, s38
        v_cmp_eq_u32 s[56:57], 1, v13
        s_lshl_b32 s49, s35, 10
        s_lshl_b32 s38, s63, 7
        s_add_u32 s49, s49, s38
        s_add_u32 s49, s49, {QL}
        s_waitcnt vmcnt(0)''')
        for T in range(4):
            for j in range(4): a(f'ds_read_b128 v[{104+16*T+4*j}:{107+16*T+4*j}], v{4+j} offset:{T*4096}')
            a('s_waitcnt lgkmcnt(0)')
        self.sig(C_LATE, 5)
        a('s_setprio 2')
        self.stamp(4)
        self.wait(C_S2, 4, 5)
        def f2():
            a('''s_or_b32 s38, s2, s33
            s_cbranch_scc1 L_C_f2
            v_mov_b32 v5, 0
            s_mov_b64 exec, 1
            global_store_dword v5, v8, s[28:29] offset:128 sc1
            s_mov_b64 exec, -1
            L_C_f2:''')
        if o['f2'] == 0: f2()
        self.stamp(5)
        for p in range(4):
            for w in range(4): a(f'ds_read_b128 v[{40+16*p+4*w}:{43+16*p+4*w}], v12 offset:{(w*4+p)*1024}')
            if p == 2: a('s_waitcnt lgkmcnt(8)')
        for p in range(4):
            a(f's_waitcnt lgkmcnt({12-4*p})')
            r = 40 + 16*p
            for j in range(4): a(f'v_add_f32 v{r+j}, v{r+j}, v{r+4+j}\nv_add_f32 v{r+8+j}, v{r+8+j}, v{r+12+j}')
            for j in range(4): a(f'v_add_f32 v{r+j}, v{r+j}, v{r+8+j}')
            for j in range(4): a(f'v_cvt_pk_bf16_f32 v{r+j}, v{r+j}, v{r+j}')
            for j in range(4): a(f'v_and_b32 v{16+4*j+p}, v{r+j}, v14')
        for j in range(4):
            for T in range(4):
                r = 104 + 16*T + 4*j
                a(f'v_mfma_f32_16x16x32_bf16 v[{40+4*T}:{43+4*T}], v[{r}:{r+3}], v[{16+4*j}:{19+4*j}], ' + ('0' if j == 0 else f'v[{40+4*T}:{43+4*T}]'))
        for r in range(16): a(f'v_add_f32_dpp v{40+r}, v{40+r}, v{40+r} quad_perm:[1,0,3,2] {DPPF}')
        for r in range(8): a(f'v_cndmask_b32 v{40+r}, v{40+r}, v{48+r}, s[56:57]')
        for r in range(4): a(f'v_cvt_pk_bf16_f32 v{40+r}, v{40+2*r}, v{41+2*r}')
        a('buffer_store_dwordx4 v[40:43], v15, s[40:43], s49 offen sc1')
        if o['f2'] == 1: f2()
        self.sig(C_QS, 5)
        self.stamp(6)
        a('s_waitcnt vmcnt(0)')
        self.sig(C_QP, 5)
        a('L_C_t:\ns_setprio 0\nv_and_b32 v5, 15, v1\ns_cmp_ge_u32 s34, 4\ns_cbranch_scc1 L_C_o')
        a('s_cmp_ge_u32 s35, 28\ns_cbranch_scc1 L_end')
        if o['fft']:
            a(f'''s_and_b32 s38, s34, 1
            s_lshl2_add_u32 s38, s38, s33
            s_lshl_b32 s38, s38, 6
            v_add_u32 v12, s38, v1
            s_cmp_lt_u32 s34, 2
            s_movk_i32 s38, 128
            s_cselect_b32 s38, 3584, s38
            s_cselect_b32 s39, 7, 16
            s_cselect_b32 s52, s18, s20
            s_cselect_b32 s53, s19, s21
            v_mul_lo_u32 v12, v12, s38
            s_lshl_b32 s38, s35, s39
            v_add_u32 v12, s38, v12''')
            self.twait(o['trg1'], 6)
            a('global_load_dword v166, v12, s[52:53]')
        a(f'''v_bfe_u32 v12, v1, 4, 1
        v_lshlrev_b32 v12, 1, v12
        v_and_b32 v13, 7, v1
        v_xor_b32 v12, v12, v13
        v_lshlrev_b32 v164, 4, v12
        v_lshrrev_b32 v165, 3, v1
        v_lshlrev_b32 v14, 2, v5
        v_add_u32 v14, {LNB}, v14
        v_mov_b32 v15, -1''')
        self.wait(C_FR, 4, 6, sleep=1)
        a('ds_write_b32 v14, v15')
        self.stamp(12)
        self.srd(44, 18, 1835008)
        a('s_lshl_b32 s58, s35, 7')
        self.w1_dma(3584, 'f1')
        a(f'''
        s_mov_b32 s44, s20
        s_mov_b32 s45, s21
        v_lshrrev_b32 v6, 4, v1
        v_lshlrev_b32 v12, 1, v6
        v_xor_b32 v12, v12, v5
        v_lshlrev_b32 v12, 4, v12
        v_lshl_add_u32 v12, v6, 10, v12
        v_xor_b32 v13, 0x80, v12
        s_lshl_b32 s58, s35, 16
        s_lshl_b32 s38, s33, 8
        s_add_u32 s58, s58, s38
        s_add_u32 s57, s57, 65536
        s_mov_b32 s59, 0
        L_A_f2:
        s_xor_b32 s38, s59, s56
        s_lshl_b32 s39, s38, 12
        s_add_u32 s39, s39, s57
        s_lshl_b32 s38, s38, 14
        s_add_u32 s38, s38, s58''')
        for i in range(4):
            a(f'''s_add_u32 m0, s39, {i*1024}
            s_add_u32 s60, s38, {i*4096}
            buffer_load_dwordx4 v{12+(i>>1)}, s[44:47], s60 offen{o['nt_w']} lds
            s_waitcnt vmcnt({o['thr_f']})''')
        a(f'''s_add_u32 s59, s59, 1
        s_cmp_lt_u32 s59, 4
        s_cbranch_scc1 L_A_f2''')
        a('s_waitcnt vmcnt(0)')
        self.sig(C_FFW, 6)
        self.stamp(8)
        a('s_branch L_end')
        a('L_C_o:')
        self.srd(44, 14, 4194304)
        self.slotmasks(20, 1, 16)
        a(f'''
        s_mov_b32 s38, 0x3f803f80
        v_and_b32 v20, s38, v20
        v_and_b32 v21, s38, v21
        v_and_b32 v22, s38, v22
        v_and_b32 v23, s38, v23
        v_lshrrev_b32 v4, 4, v1            ; g
        s_and_b32 s62, s34, 3
        v_lshlrev_b32 v7, 11, v4
        v_lshl_add_u32 v7, v5, 4, v7
        s_lshl_b32 s50, s35, 13
        s_lshl_b32 s38, s33, 8
        s_add_u32 s50, s50, s38
        s_add_u32 s50, s50, {CTXP}
        v_and_b32 v12, 1, v4
        v_lshrrev_b32 v13, 1, v4
        v_lshl_add_u32 v12, v12, 1, v13
        s_lshl_b32 s38, s33, 2
        v_add_u32 v12, s38, v12
        v_mul_u32_u24 v12, {RS}, v12
        v_lshl_add_u32 v18, v5, 4, v12
        v_lshlrev_b32 v13, 4, v13
        s_mov_b32 s38, 0xffff
        v_lshlrev_b32 v19, v13, s38
        v_mul_u32_u24 v3, {RS}, v5
        v_lshl_add_u32 v3, v4, 4, v3
        v_lshlrev_b32 v2, 12, v4
        v_lshl_add_u32 v2, v5, 3, v2
        v_lshlrev_b32 v4, 16, v4
        v_lshl_add_u32 v4, v5, 3, v4
        s_lshl1_add_u32 s38, s62, s33
        s_lshl_b32 s38, s38, 7
        s_lshl_b32 s48, s35, 17
        s_add_u32 s48, s48, s38
        s_lshl_b32 s49, s35, 10
        s_add_u32 s49, s49, s38
        s_add_u32 s49, s49, {OUTP}
        s_add_u32 s51, s49, 32768
        s_lshl_b32 s38, s62, 15
        s_lshl_b32 s60, s35, 7
        s_add_u32 s60, s60, s38
        s_add_u32 s60, s60, {YP + 28*1024}
        s_cmp_ge_u32 s33, 2
        s_cbranch_scc1 L_C_o1''')
        self.twait(o['two'], 6)
        self.stamp(12)
        self.gv_load(104, 2, lambda t, i: (16*t + i)*1024, o['thr_c'], o['two'] < 6)
        self.stamp(7)
        a('L_C_o1:')
        self.wait(C_CL, 8, 6, sleep=1)
        a('s_setprio 2')
        self.wait(C_CX, 2, 6)
        self.stamp(8)
        def hint():
            a('''s_cmp_lg_u32 s33, 2
            s_cbranch_scc1 L_C_nh
            v_mov_b32 v12, 0
            s_mov_b64 exec, 1
            buffer_store_dword v12, v12, s[40:43], s60 offen sc1
            s_mov_b64 exec, -1
            L_C_nh:''')
        if o['hp'] == 0: hint()
        a('''L_C_x:
        buffer_load_dwordx4 v[40:43], v7, s[40:43], s50 offen sc1
        buffer_load_dwordx4 v[44:47], v7, s[40:43], s50 offen offset:1024 sc1''')
        self.budget()
        a('''s_waitcnt vmcnt(1)
        v_mfma_f32_16x16x32_bf16 v[24:27], v[20:23], v[40:43], 0
        s_waitcnt vmcnt(0)
        v_mfma_f32_16x16x32_bf16 v[28:31], v[20:23], v[44:47], 0''')
        self.check(40, 8, 12)
        a('s_cbranch_vccnz L_C_x')
        for h in range(2):
            for i in range(4): a(f'v_cvt_pk_bf16_f32 v{24+4*h+i}, v{24+4*h+i}, v{24+4*h+i}')
            for i in range(4): a(f'v_and_b32 v{24+4*h+i}, v{24+4*h+i}, v19')
            a(f'ds_write_b128 v18, v[{24+4*h}:{27+4*h}] offset:{256*h}')
        self.sig(C_X2, 6)
        a('''s_cmp_lt_u32 s33, 2
        s_cbranch_scc1 L_C_o2''')
        if o['hp'] == 2: self.wait(C_X2, 4, 6)
        if o['hp'] >= 1: hint()
        a('s_branch L_end\nL_C_o2:')
        self.wait(C_X2, 4, 6)
        self.stamp(9)
        self.gv_run(104, 40, 3, lambda t: 64*t)
        a('''buffer_store_dwordx2 v[8:9], v4, s[40:43], s49 offen sc1
        buffer_store_dwordx2 v[10:11], v4, s[40:43], s51 offen sc1''')
        self.stamp(10)

    def epilogue(self):
        a = self.a
        a('L_end:')
        if 'leak' in self.o:
            g, k = divmod(self.o['leak'], 100)
            self.stamp(15)
            a(f'''s_waitcnt lgkmcnt(0)
            s_lshr_b32 s38, s32, 2
            s_cmp_lg_u32 s38, {g}
            s_cbranch_scc1 L_exit
            s_cmp_eq_u32 s{64+2*k}, 0
            s_cbranch_scc1 L_exit
            s_add_u32 s39, s{64+2*k}, 6000
            L_lk:
            s_memrealtime s[56:57]
            s_sub_u32 s3, s3, 1
            s_cbranch_scc1 L_exit
            s_waitcnt lgkmcnt(0)
            s_sub_u32 s38, s56, s39
            s_cmp_lt_i32 s38, 0
            s_cbranch_scc1 L_lk''')
        if self.dbg:
            self.stamp(15)
            a('s_waitcnt lgkmcnt(0)\ns_mov_b64 exec, -1')
            for k in range(16): a(f'v_mov_b32 v{8+k}, s{64+2*k}')
            a(f'''v_mov_b32 v22, s3
            s_mul_i32 s38, s2, 12
            s_add_u32 s38, s38, s32
            s_lshl_b32 s38, s38, 6
            s_add_u32 s38, s38, {STMP}
            v_mov_b32 v2, 0
            s_mov_b64 exec, 1''')
            for k in range(4): a(f'buffer_store_dwordx4 v[{8+4*k}:{11+4*k}], v2, s[40:43], s38 offen offset:{16*k}')
        a('L_exit:\ns_endpgm\nL_codeend:')

    def build(self):
        a = self.a; K = NAME + '_kernel'
        kstart(a, K)
        n0 = len(a.L)
        self.prologue(); self.groupA(); self.groupB(); self.groupC(); self.epilogue()
        body, nn = hazard.fix(a.L[n0:])
        a.L[n0:] = body
        kdesc(a, K, 168, 168)
        h = Asm()
        pre, post = self.o.get('pre', 0), self.o.get('post', 0)
        if pre or post:
            d = ('nop_kernel', self.o.get('ng', 256), self.o.get('nb2', 64), self.o.get('nl', 0))
            header(h, [d]*pre + [(K, 256, 768, 163840)] + [d]*post)
            kstart(a, 'nop_kernel'); a('s_endpgm'); kdesc(a, 'nop_kernel', 8, 8)
        else:
            header(h, [(None, 256, 768, 163840)])
        return h.text() + a.text(), nn

if __name__ == '__main__':
    out = sys.argv[1]
    dbg = 'dbg' in sys.argv[2:]
    opt = {}
    for x in sys.argv[2:]:
        if '=' in x:
            k, v = x.split('=')
            opt[k] = int(v) if v.lstrip('-').isdigit() else (' ' + v if v else '')
    t, nn = G(dbg, opt).build()
    open(out, 'w').write(t)
    print('written', out, 'nops inserted', nn)
```

```python
import re, subprocess, tempfile, os
OK = ('v_mov_b32','v_add_u32','v_and_b32','v_or_b32','v_xor_b32','v_lshlrev_b32','v_lshrrev_b32','v_add_f32','v_sub_f32','v_mul_f32','v_max_f32','v_max_u32',
      'v_min_u32','v_exp_f32','v_rcp_f32','v_rsq_f32','v_mul_u32_u24','v_subrev_u32','v_cmp_eq_u32','v_cmp_gt_u32','v_cmp_ne_u32','v_cndmask_b32')
def isinst(l):
    t = l.split(';')[0].strip()
    return bool(t) and not t.endswith(':') and not t.startswith('.')
def sizes(lines):
    d = tempfile.mkdtemp()
    open(d + '/a.s', 'w').write('.amdgcn_target "amdgcn-amd-amdhsa--gfx950"\n.text\n' + '\n'.join(l for l in lines if not l.startswith('.fill')) + '\n')
    subprocess.run(['clang', '-x', 'assembler', '-target', 'amdgcn-amd-amdhsa', '-mcpu=gfx950', '-c', d + '/a.s', '-o', d + '/a.o'], check=True)
    out = subprocess.run(['llvm-objdump', '-d', '--mcpu=gfx950', d + '/a.o'], capture_output=True, text=True).stdout
    return [4*len(m.group(1).split()) for m in re.finditer(r'// [0-9A-F]{12}: ([0-9A-F ]+)', out)]
def fix(lines, nmin=5, nnop=8, start='L_A:'):
    idx = [i for i, l in enumerate(lines) if isinst(l)]
    sz = sizes(lines)
    assert len(sz) == len(idx), (len(sz), len(idx))
    first = lines.index(start)
    lines = list(lines); ins = {}
    addr = 0; k = 0; floor = 0; nw = nn = 0
    while k < len(idx):
        if sz[k] == 8:
            e = k
            while e < len(idx) and sz[e] == 8: e += 1
            if e - k >= nmin and idx[k] > first:
                if addr % 8 == 4:
                    c = None
                    for q in range(k-1, floor-1, -1):
                        op = lines[idx[q]].split()[0]
                        if sz[q] == 4 and op in OK and idx[q] > first: c = q; break
                    if c is not None:
                        l = lines[idx[c]]; op = l.split()[0]
                        lines[idx[c]] = l.replace(op, op + '_e64', 1); addr += 4; nw += 1
                    elif e - k >= nnop:
                        ins[idx[k]] = 's_nop 0'; addr += 4; nn += 1
                floor = e
            addr += 8*(e - k); k = e
        else:
            addr += sz[k]; k += 1
    out = []
    for i, l in enumerate(lines):
        if i in ins: out.append(ins[i])
        out.append(l)
    return out, nw, nn

def pads(lines, step, only='bcfgso'):
    lines = [l for l in lines if not (l.startswith('@') and l.split()[1] not in only)]
    plain = [l for l in lines if not l.startswith('@')]
    sz = iter(sizes(plain))
    out = []; cur = None; acc = 0; full = True; cnt = {}
    for l in lines:
        if l.startswith('@W'):
            n = l.split()[1]
            if step: out += ['s_mov_b64 exec, 0', f's_branch L_pad_{n}_0', f'L_pad_{n}_r:', 's_mov_b64 exec, -1']
            continue
        if l.startswith('@B'): cur = l.split()[1]; acc = step; full = True; continue
        if l.startswith('@E'): cur = None; continue
        if isinst(l):
            z = next(sz)
            if cur and step and acc >= step and full:
                k = cnt.get(cur, 0); cnt[cur] = k + 1
                out += [f'L_pad_{cur}_{k}:', f's_cbranch_execz L_pad_{cur}_{k+1}']; acc = 0
            acc += z
            t = l.split(';')[0].strip()
            if re.match(r's_\w+ exec', t): full = t == 's_mov_b64 exec, -1'
        out.append(l)
    for n, k in cnt.items():
        out = [f's_cbranch_execz L_pad_{n}_r' if l == f's_cbranch_execz L_pad_{n}_{k}' else l for l in out]
    return out
```
